```python
import torch

def _softmax(x, axis=-1):
    return torch.softmax(x, dim=axis)
def _gelu(x):
    return torch.nn.functional.gelu(x, approximate="tanh")
def _silu(x):
    return torch.nn.functional.silu(x)
def _sigmoid(x):
    return torch.sigmoid(x)
def _layernorm(x, axis=-1, eps=1e-5):
    m = x.mean(dim=axis, keepdim=True)
    v = x.var(dim=axis, keepdim=True, unbiased=False)
    return (x - m) / torch.sqrt(v + eps)
def _scatter_add(tgt, idx, src, axis=0):
    return tgt.clone().index_add_(axis, idx, src)
def _segment_sum(src, seg, n):
    out = torch.zeros((n,) + src.shape[1:], dtype=src.dtype)
    return out.index_add_(0, seg, src)
def _pad(x, pw):
    flat = tuple(v for pair in reversed(pw) for v in pair)
    return torch.nn.functional.pad(x, flat)

kernel_name = 'standalone__channel_attn_se__vision'

def setup_inputs():

    _w = (lambda a: (lambda t: t.to(torch.bfloat16) if t.is_floating_point() else t)(torch.as_tensor(a)))
    H = W = 512
    C = 192
    r = max(C // 16, 4)
    return {
        "x": _w((lambda *s: torch.randn(*s, dtype=torch.bfloat16) * 3.2)(1, H, W, C)),
        "w_down": _w((lambda *s: torch.randn(*s, dtype=torch.bfloat16) * 3.2)(C, r)),
        "w_up": _w((lambda *s: torch.randn(*s, dtype=torch.bfloat16) * 3.2)(r, C)),
    }

def reference(x, w_down, w_up):
    s = x.mean(axis=(1, 2))
    h = _silu(torch.einsum('bc,cr->br', s, w_down))
    g = _sigmoid(torch.einsum('br,rc->bc', h, w_up))
    return x * g[:, None, None, :]
```

```python
import sys

NAME = "standalone__channel_attn_se__vision"
XBYTES = 512 * 512 * 192 * 2

DEFAULTS = dict(
    MAP="A",
    LDF="nt",
    STF="nt",
    R=8,
    DIAG=0,
    FLAGPOS=40,
    SLEEP=0,
    POLLMAX=4096,
    FORCE_FALLBACK=0,
)

L_ACC = 0x0000
L_S = 0x0400
L_G = 0x0800
L_WD = 0x1000
L_WU = 0x3000
LDS_BYTES = 0x5000
ACC_STRIDE = 56

WS_CNT = 16384
WS_DIAG = 65536


def gen(**kw):
    P = dict(DEFAULTS)
    P.update(kw)
    R = P["R"]
    assert R in (1, 2, 4, 8)
    o = []
    e = o.append

    def stamp(k):
        if P["DIAG"]:
            e(f"    s_memrealtime s[{40+2*k}:{41+2*k}]")

    def build_A():
        e("    v_and_b32 v16, 1, v4")
        e("    v_cmp_eq_u32 vcc, 1, v16")
        e("    v_mov_b32 v17, 0x3f80")
        e("    v_mov_b32 v18, 0x3f800000")
        e("    v_cndmask_b32 v17, v17, v18, vcc")
        e("    v_lshrrev_b32 v16, 1, v4               ; j>>1")
        for q in range(8):
            e(f"    v_cmp_eq_u32 vcc, {q}, v16")
            e("    s_nop 1")
            e(f"    v_cndmask_b32 v{8+q}, 0, v17, vcc")

    def acc_addrs():
        e("    v_and_b32 v17, 1, v5                   ; g4&1")
        e("    v_add_u32 v16, 16, v4")
        e("    v_subrev_u32 v18, 24, v16")
        e("    v_min_u32 v16, v16, v18                ; (16+j) mod 24")
        e("    v_lshlrev_b32 v7, 5, v16")
        e(f"    v_add_u32 v7, {L_G}, v7")
        e("    v_cmp_gt_u32 vcc, 2, v5")
        e("    s_nop 1")
        e("    v_cndmask_b32 v16, v16, v4, vcc")
        e("    v_lshl_add_u32 v16, v16, 1, v17")
        e("    v_lshlrev_b32 v60, 2, v16")
        e("    v_lshl_add_u32 v16, v4, 1, v17")
        e("    v_add_u32 v16, 16, v16")
        e("    v_lshlrev_b32 v61, 2, v16")

    def acc_to_lds():
        for r in range(4):
            e(f"    ds_add_f32 v60, v{16+r} offset:{L_ACC + r*ACC_STRIDE*4}")
        for r in range(4):
            e(f"    ds_add_f32 v61, v{20+r} offset:{L_ACC + r*ACC_STRIDE*4}")

    e(f"; @launch grid=(256,1,1) block=(512,1,1) lds={LDS_BYTES}")
    e('.amdgcn_target "amdgcn-amd-amdhsa--gfx950"')
    e(".text")
    e(f".globl {NAME}_kernel")
    e(".p2align 8")
    e(f".type {NAME}_kernel,@function")
    e(f"{NAME}_kernel:")
    e("    s_load_dwordx8 s[4:11], s[0:1], 0")
    e("    s_load_dwordx4 s[12:15], s[0:1], 32")
    stamp(0)
    e("    s_cmp_ge_u32 s2, 256")
    e("    s_cbranch_scc1 L_end")
    e("    v_and_b32 v2, 63, v0                   ; lane")
    e("    v_lshrrev_b32 v3, 6, v0")
    e("    v_and_b32 v4, 15, v0                   ; j")
    e("    v_bfe_u32 v5, v0, 4, 2                 ; g4")
    e("    v_mul_u32_u24 v1, 768, v5")
    e("    v_lshl_add_u32 v1, v4, 4, v1           ; 768*g4 + 16*j")
    e("    v_readfirstlane_b32 s3, v3")
    e("    v_lshlrev_b32 v6, 4, v0")
    e("    v_mul_u32_u24 v7, 768, v3")
    e("    v_lshl_add_u32 v7, v2, 3, v7")
    if P["MAP"] == "A":
        step = 2048 * 3072
        e("    s_lshl_b32 s33, s2, 3")
        e("    s_add_u32 s33, s33, s3")
        e("    s_mul_i32 s33, s33, 3072")
    elif P["MAP"] == "B":
        step = 8 * 3072
        e("    s_mul_i32 s33, s2, 393216")
        e("    s_mul_i32 s34, s3, 3072")
        e("    s_add_u32 s33, s33, s34")
    elif P["MAP"] == "C":
        step = 3072
        e("    s_lshl_b32 s33, s2, 3")
        e("    s_add_u32 s33, s33, s3")
        e("    s_mul_i32 s33, s33, 49152")
    else:
        raise ValueError
    e("    s_mov_b32 s18, %d" % XBYTES)
    e("    s_mov_b32 s19, 0x00020000")
    e("    s_mov_b32 s22, %d" % XBYTES)
    e("    s_mov_b32 s23, 0x00020000")
    e("    s_mov_b32 s26, 4608")
    e("    s_mov_b32 s27, 0x00020000")
    e("    s_mov_b32 s30, 4608")
    e("    s_mov_b32 s31, 0x00020000")
    e("    s_mov_b32 s32, s33")
    e("    s_waitcnt lgkmcnt(0)")
    e("    s_mov_b32 s16, s4")
    e("    s_mov_b32 s17, s5")
    e("    s_mov_b32 s24, s6")
    e("    s_mov_b32 s25, s7")
    e("    s_mov_b32 s28, s8")
    e("    s_mov_b32 s29, s9")
    e("    s_mov_b32 s20, s10")
    e("    s_mov_b32 s21, s11")
    e("    s_add_u32 s38, s14, 4096")
    e("    s_addc_u32 s39, s15, 0                 ; ws + 4096")
    e("    buffer_load_dwordx4 v[48:51], v6, s[24:27], 0 offen")
    e("    buffer_load_dwordx2 v[52:53], v7, s[28:31], 0 offen")
    e("    buffer_load_dwordx2 v[54:55], v7, s[28:31], 0 offen offset:384")
    e("    v_lshlrev_b32 v3, 4, v2                ; lane*16")
    e("    s_or_b32 s34, s2, s3")
    e("    s_cmp_lg_u32 s34, 0")
    e("    s_cbranch_scc1 L_noinit")
    e("    v_mov_b32 v8, 0")
    e("    v_mov_b32 v9, 0")
    e("    v_mov_b32 v10, 0")
    e("    v_mov_b32 v11, 0")
    for r in range(R):
        b = "s[14:15]" if r < 4 else "s[38:39]"
        e(f"    global_store_dwordx4 v3, v[8:11], {b} offset:{(r % 4) * 1024} sc1")
    e(f"    v_add_u32 v12, {WS_CNT}, v3")
    e("    global_store_dwordx4 v12, v[8:11], s[14:15] sc1")
    e("    v_mov_b32 v13, 1")
    e("    s_waitcnt vmcnt(0)")
    e("    s_mov_b64 exec, 1")
    e("    global_store_dword v8, v13, s[12:13] sc1")
    e("    s_mov_b64 exec, -1")
    e("L_noinit:")
    for t in range(16):
        for m in range(3):
            i = 3 * t + m
            d = 64 + 4 * i
            e(f"    buffer_load_dwordx4 v[{d}:{d+3}], v1, s[16:19], s32 offen offset:{256*m} {P['LDF']}")
        if t < 15:
            e(f"    s_add_u32 s32, s32, {step}")
    stamp(1)
    build_A()
    e("    v_lshlrev_b32 v16, 2, v0")
    e("    v_mov_b32 v17, 0")
    e("    ds_write_b32 v16, v17")
    e("    s_mov_b32 s34, 0x05040100")
    e("    s_mov_b32 s35, 0x07060302")
    e("    s_waitcnt vmcnt(48)")
    e(f"    ds_write_b128 v6, v[48:51] offset:{L_WD}")
    e("    v_perm_b32 v56, v54, v52, s34")
    e("    v_perm_b32 v57, v54, v52, s35")
    e("    v_perm_b32 v58, v55, v53, s34")
    e("    v_perm_b32 v59, v55, v53, s35")
    e(f"    ds_write_b128 v6, v[56:59] offset:{L_WU}")
    e("    v_mov_b32 v62, 0")
    acc_addrs()
    e("    v_lshlrev_b32 v6, 5, v4")
    e(f"    v_add_u32 v6, {L_G}, v6")
    for q in range(8):
        e(f"    v_mov_b32 v{16+q}, 0")
    e("    s_waitcnt lgkmcnt(0)")
    e("    s_barrier                              ; B1")
    e("    s_cmp_lg_u32 s3, 0")
    e("    s_cbranch_scc1 L_nogather")
    e("    v_mul_u32_u24 v63, 192, v5")
    e("    v_lshl_add_u32 v63, v4, 1, v63         ; 192*g4 + 2*i")
    for kk in range(6):
        for q in range(4):
            off = L_WD + 768 * kk + 48 * q
            e(f"    ds_read_u16 v{48+2*q}, v63 offset:{off}")
            e(f"    ds_read_u16 v{49+2*q}, v63 offset:{off+24}")
        e("    s_waitcnt lgkmcnt(0)")
        for q in range(4):
            e(f"    v_lshl_or_b32 v{24+4*kk+q}, v{49+2*q}, 16, v{48+2*q}")
    e("L_nogather:")
    for i in range(48):
        t, m = divmod(i, 3)
        d = 64 + 4 * i
        e(f"    s_waitcnt vmcnt({47-i})")
        if m == 0:
            e(f"    v_mfma_f32_16x16x32_bf16 v[16:19], v[8:11], v[{d}:{d+3}], v[16:19]")
        elif m == 1:
            e(f"    v_mfma_f32_16x16x32_bf16 v[16:19], v[12:15], v[{d}:{d+3}], v[16:19]")
        else:
            a = 8 if t % 2 == 0 else 12
            e(f"    v_mfma_f32_16x16x32_bf16 v[20:23], v[{a}:{a+3}], v[{d}:{d+3}], v[20:23]")
        if i == P["FLAGPOS"]:
            e("    s_cmp_lg_u32 s3, 0")
            e("    s_cbranch_scc1 L_noflagld")
            e("    global_load_dword v63, v62, s[12:13] sc1")
            e("L_noflagld:")
    stamp(2)
    e("    s_nop 7")
    acc_to_lds()
    e("    s_waitcnt lgkmcnt(0)")
    e("    s_barrier                              ; B2")
    e("    s_cmp_lg_u32 s3, 0")
    e("    s_cbranch_scc1 L_wait_g")
    e("    v_and_b32 v48, 3, v2")
    e(f"    v_mul_u32_u24 v48, {ACC_STRIDE}, v48")
    e("    v_lshrrev_b32 v49, 2, v2")
    e("    v_add_lshl_u32 v48, v48, v49, 2")
    for n in range(3):
        e(f"    ds_read_b32 v{50+n}, v48 offset:{L_ACC + 64*n}")
    e(f"    s_and_b32 s34, s2, {R-1}               ; replica")
    e("    s_lshl_b32 s35, s34, 10")
    e("    v_lshlrev_b32 v49, 2, v2")
    e("    v_add_u32 v49, s35, v49")
    e("    s_lshl_b32 s35, s34, 7")
    e(f"    s_add_u32 s35, s35, {WS_CNT}")
    e("    v_mov_b32 v53, s35")
    e("    v_mov_b32 v54, 1")
    e("    v_lshlrev_b32 v55, 7, v2")
    e(f"    v_add_u32 v55, {WS_CNT}, v55           ; counter[lane]")
    e(f"    s_mov_b32 s36, {P['POLLMAX']}")
    e("L_flagcheck:")
    e("    s_waitcnt vmcnt(0)")
    e("    v_readfirstlane_b32 s35, v63")
    e("    s_cmp_lg_u32 s35, 0")
    e("    s_cbranch_scc1 L_flagok")
    e("    s_sub_u32 s36, s36, 1")
    e("    s_cbranch_scc1 L_fallback")
    e("    s_sleep 4")
    e("    global_load_dword v63, v62, s[12:13] sc1")
    e("    s_branch L_flagcheck")
    e("L_flagok:")
    e("    s_waitcnt lgkmcnt(0)")
    for n in range(3):
        e(f"    global_atomic_add_f32 v49, v{50+n}, s[14:15] offset:{256*n}")
    e("    s_waitcnt vmcnt(0)")
    e("    s_mov_b64 exec, 1")
    e("    global_atomic_add v53, v54, s[14:15]")
    e(f"    s_mov_b64 exec, {(1 << R) - 1}")
    stamp(3)
    e(f"    s_mov_b32 s36, {P['POLLMAX']}")
    if P["FORCE_FALLBACK"]:
        e("    s_mov_b64 exec, -1")
        e("    s_branch L_fallback")
    e("L_poll:")
    e("    global_load_dword v56, v55, s[14:15] sc1")
    e("    s_waitcnt vmcnt(0)")
    e(f"    v_cmp_ne_u32 vcc, {256 // R}, v56")
    e("    s_cbranch_vccz L_pollok")
    if P["SLEEP"]:
        e(f"    s_sleep {P['SLEEP']}")
    e("    s_sub_u32 s36, s36, 1")
    e("    s_cbranch_scc0 L_poll")
    e("    s_mov_b64 exec, -1")
    e("    s_branch L_fallback")
    e("L_pollok:")
    e("    s_mov_b64 exec, -1")
    stamp(4)
    rep_regs = [8, 12, 16, 20, 48, 52, 56, 60]
    for r in range(R):
        d = rep_regs[r]
        b = "s[14:15]" if r < 4 else "s[38:39]"
        e(f"    global_load_dwordx4 v[{d}:{d+3}], v3, {b} offset:{(r % 4) * 1024} sc1")
    for r in range(1, R):
        e(f"    s_waitcnt vmcnt({R-1-r})")
        d = rep_regs[r]
        e(f"    v_pk_add_f32 v[8:9], v[8:9], v[{d}:{d+1}]")
        e(f"    v_pk_add_f32 v[10:11], v[10:11], v[{d+2}:{d+3}]")
    if R == 1:
        e("    s_waitcnt vmcnt(0)")
    e("L_mlp:")
    e("    v_mul_f32 v8, 0x36800000, v8           ; * 2^-18")
    e("    v_mul_f32 v9, 0x36800000, v9")
    e("    v_mul_f32 v10, 0x36800000, v10")
    e("    v_mul_f32 v11, 0x36800000, v11")
    e("    v_cvt_pk_bf16_f32 v8, v8, v9")
    e("    v_cvt_pk_bf16_f32 v9, v10, v11")
    e("    v_lshlrev_b32 v10, 3, v2")
    e(f"    ds_write_b64 v10, v[8:9] offset:{L_S}")
    e("    v_lshlrev_b32 v10, 4, v5               ; 16*g4")
    sregs = [12, 16, 20, 48, 52, 56]
    for kk in range(6):
        d = sregs[kk]
        e(f"    ds_read_b128 v[{d}:{d+3}], v10 offset:{L_S + 64*kk}")
    for kk in range(6):
        d = sregs[kk]
        w = 24 + 4 * kk
        e(f"    s_waitcnt lgkmcnt({5-kk})" if not P["DIAG"] else "    s_waitcnt lgkmcnt(0)")
        c = "0" if kk == 0 else "v[8:11]"
        e(f"    v_mfma_f32_16x16x32_bf16 v[8:11], v[{d}:{d+3}], v[{w}:{w+3}], {c}")
    for p in range(6):
        e(f"    ds_read_b128 v[{24+4*p}:{27+4*p}], v3 offset:{L_WU + 1024*p}")
    e("    s_mov_b32 s34, 0xbfb8aa3b              ; -log2(e)")
    e("    s_mov_b32 s35, 0xbfb8aa3b")
    e("    s_nop 1")
    e("    v_cvt_pk_bf16_f32 v8, v8, v8")
    e("    v_lshlrev_b32 v8, 16, v8")
    e("    v_mul_f32 v9, s34, v8")
    e("    v_exp_f32 v9, v9")
    e("    s_nop 0")
    e("    v_add_f32 v9, 1.0, v9")
    e("    v_rcp_f32 v9, v9")
    e("    s_nop 0")
    e("    v_mul_f32 v8, v8, v9                   ; silu")
    e("    s_nop 1")
    e("    v_mov_b32_dpp v9, v8 quad_perm:[1,0,3,2] row_mask:0xf bank_mask:0xf")
    e("    v_cvt_pk_bf16_f32 v8, v8, v9           ; even lanes: {h[j], h[j+1]}")
    e("    s_nop 0")
    for p in range(6):
        e(f"    v_readlane_b32 s{64+p}, v8, {2*p}")
    e("    s_waitcnt lgkmcnt(0)")
    for p in range(6):
        for n in range(4):
            c = "0" if p == 0 else f"v{12+n}"
            e(f"    v_dot2_f32_bf16 v{12+n}, v{24+4*p+n}, s{64+p}, {c}")
    e("    s_nop 2")
    e("    v_cvt_pk_bf16_f32 v8, v12, v13")
    e("    v_cvt_pk_bf16_f32 v9, v14, v15")
    e("    v_lshlrev_b32 v12, 16, v8")
    e("    v_and_b32 v13, 0xffff0000, v8")
    e("    v_lshlrev_b32 v14, 16, v9")
    e("    v_and_b32 v15, 0xffff0000, v9")
    e("    v_pk_mul_f32 v[12:13], v[12:13], s[34:35]")
    e("    v_pk_mul_f32 v[14:15], v[14:15], s[34:35]")
    for n in range(4):
        e(f"    v_exp_f32 v{12+n}, v{12+n}")
    e("    s_nop 0")
    for n in range(4):
        e(f"    v_add_f32 v{12+n}, 1.0, v{12+n}")
    for n in range(4):
        e(f"    v_rcp_f32 v{12+n}, v{12+n}")
    e("    s_nop 0")
    e("    v_cvt_pk_bf16_f32 v8, v12, v13")
    e("    v_cvt_pk_bf16_f32 v9, v14, v15")
    e("    v_lshlrev_b32 v12, 16, v8")
    e("    v_and_b32 v13, 0xffff0000, v8")
    e("    v_lshlrev_b32 v14, 16, v9")
    e("    v_and_b32 v15, 0xffff0000, v9")
    e(f"    ds_write_b128 v3, v[12:15] offset:{L_G}")
    e("    s_waitcnt lgkmcnt(0)")
    stamp(5)
    e("L_wait_g:")
    e("    s_barrier                              ; B3")
    e("    ds_read_b128 v[24:27], v6")
    e("    ds_read_b128 v[28:31], v6 offset:16")
    e("    ds_read_b128 v[32:35], v7")
    e("    ds_read_b128 v[36:39], v7 offset:16")
    e("    ds_read_b128 v[40:43], v6 offset:256")
    e("    ds_read_b128 v[44:47], v6 offset:272")
    e("    s_mov_b32 s34, 0xffff0000")
    e("    s_mov_b32 s32, s33")
    e("    s_waitcnt lgkmcnt(0)")
    for t in range(16):
        for m in range(3):
            i = 3 * t + m
            d = 64 + 4 * i
            g = 24 + 8 * m
            tb = 8 + 8 * (i % 2)
            for q in range(4):
                e(f"    v_lshlrev_b32 v{tb+2*q}, 16, v{d+q}")
                e(f"    v_and_b32 v{tb+2*q+1}, s34, v{d+q}")
            for q in range(4):
                e(f"    v_pk_mul_f32 v[{tb+2*q}:{tb+2*q+1}], v[{tb+2*q}:{tb+2*q+1}], v[{g+2*q}:{g+2*q+1}]")
            for q in range(4):
                e(f"    v_cvt_pk_bf16_f32 v{d+q}, v{tb+2*q}, v{tb+2*q+1}")
            e(f"    buffer_store_dwordx4 v[{d}:{d+3}], v1, s[20:23], s32 offen offset:{256*m} {P['STF']}")
        if t < 15:
            e(f"    s_add_u32 s32, s32, {step}")
    if P["DIAG"]:
        stamp(6)
        e("    s_waitcnt vmcnt(0)")
        stamp(7)
        e("    s_lshl_b32 s34, s2, 3")
        e("    s_add_u32 s34, s34, s3")
        e("    s_lshl_b32 s34, s34, 6")
        e(f"    s_add_u32 s34, s34, {WS_DIAG}")
        e("    v_mov_b32 v8, s34")
        e("    s_waitcnt lgkmcnt(0)")
        e("    s_mov_b64 exec, 1")
        for k in range(8):
            e(f"    v_mov_b32 v{10+k}, s{40+2*k}")
        e("    s_getreg_b32 s34, hwreg(HW_REG_XCC_ID)")
        e("    s_getreg_b32 s35, hwreg(HW_REG_HW_ID)")
        e("    v_mov_b32 v18, s34")
        e("    v_mov_b32 v19, s35")
        e("    global_store_dwordx4 v8, v[10:13], s[14:15]")
        e("    global_store_dwordx4 v8, v[14:17], s[14:15] offset:16")
        e("    global_store_dwordx2 v8, v[18:19], s[14:15] offset:32")
    e("L_end:")
    e("    s_endpgm")
    e("L_fallback:")
    e("    s_waitcnt vmcnt(0) lgkmcnt(0)")
    build_A()
    acc_addrs()
    e("    v_mov_b32 v16, 0")
    for n in range(4):
        e(f"    ds_write_b32 v3, v16 offset:{L_ACC + 4*n}")
    for q in range(8):
        e(f"    v_mov_b32 v{16+q}, 0")
    e("    s_mov_b32 s36, 0")
    e("L_fb_loop:")
    e("    buffer_load_dwordx4 v[48:51], v1, s[16:19], s36 offen")
    e("    buffer_load_dwordx4 v[52:55], v1, s[16:19], s36 offen offset:256")
    e("    buffer_load_dwordx4 v[56:59], v1, s[16:19], s36 offen offset:512")
    e("    s_waitcnt vmcnt(0)")
    e("    v_mfma_f32_16x16x32_bf16 v[16:19], v[8:11], v[48:51], v[16:19]")
    e("    v_mfma_f32_16x16x32_bf16 v[16:19], v[12:15], v[52:55], v[16:19]")
    e("    v_mfma_f32_16x16x32_bf16 v[20:23], v[8:11], v[56:59], v[20:23]")
    e("    s_add_u32 s36, s36, 3072")
    e(f"    s_cmp_lt_u32 s36, {XBYTES}")
    e("    s_cbranch_scc1 L_fb_loop")
    e("    s_nop 7")
    e("    s_waitcnt lgkmcnt(0)")
    acc_to_lds()
    e("    v_lshlrev_b32 v48, 2, v2")
    for r in range(4):
        e(f"    ds_read_b32 v{8+r}, v48 offset:{L_ACC + r*ACC_STRIDE*4}")
    e("    s_waitcnt lgkmcnt(0)")
    e("    s_branch L_mlp")
    e('.section .rodata,"a"')
    e(".p2align 6")
    e(f".amdhsa_kernel {NAME}_kernel")
    e("  .amdhsa_next_free_vgpr 256")
    e("  .amdhsa_next_free_sgpr 80")
    e("  .amdhsa_accum_offset 256")
    e("  .amdhsa_group_segment_fixed_size 0")
    e("  .amdhsa_kernarg_size 48")
    e("  .amdhsa_user_sgpr_count 2")
    e("  .amdhsa_user_sgpr_kernarg_segment_ptr 1")
    e("  .amdhsa_system_sgpr_workgroup_id_x 1")
    e("  .amdhsa_float_denorm_mode_32 3")
    e("  .amdhsa_float_denorm_mode_16_64 3")
    e(".end_amdhsa_kernel")
    return "\n".join(o) + "\n"


def parse_args(argv):
    out = None
    kw = {}
    for a in argv:
        if "=" in a:
            k, v = a.split("=", 1)
            try:
                v = int(v)
            except ValueError:
                v = v.replace("+", " ")
            kw[k] = v
        else:
            out = a
    return out, kw


if __name__ == "__main__":
    out, kw = parse_args(sys.argv[1:])
    txt = gen(**kw)
    if out:
        open(out, "w").write(txt)
    else:
        sys.stdout.write(txt)
```

```python
import sys

NAME = "standalone__channel_attn_se__vision"
XBYTES = 512 * 512 * 192 * 2

DEFAULTS = dict(
    MAP="A",
    LDF="nt",
    STF="nt",
    R=8,
    DIAG=0,
    FLAGPOS=40,
    SLEEP=0,
    POLLMAX=8192,
    FORCE_FALLBACK=0,
    PRETOUCH=2,
    EMPTY=0,
    ARR=1,
)

L_PART = 0x0000
L_S = 0x2000
L_G = 0x2400
L_WD = 0x3000
L_WU = 0x5000
LDS_BYTES = 0x7000

WS_CNT = 16384
WS_DIAG = 65536


def gen(**kw):
    P = dict(DEFAULTS)
    P.update(kw)
    R = P["R"]
    assert R in (1, 2, 4, 8)
    o = []
    e = o.append

    def stamp(k):
        if P["DIAG"]:
            e(f"    s_memrealtime s[{40+2*k}:{41+2*k}]")

    def build_A():
        e("    v_and_b32 v16, 1, v4")
        e("    v_cmp_eq_u32 vcc, 1, v16")
        e("    v_mov_b32 v17, 0x3f80")
        e("    v_mov_b32 v18, 0x3f800000")
        e("    v_cndmask_b32 v17, v17, v18, vcc")
        e("    v_lshrrev_b32 v16, 1, v4               ; j>>1")
        for q in range(8):
            e(f"    v_cmp_eq_u32 vcc, {q}, v16")
            e("    s_nop 1")
            e(f"    v_cndmask_b32 v{8+q}, 0, v17, vcc")
        for q in range(4):
            e(f"    v_or_b32 v{24+q}, v{8+q}, v{12+q}")
        for q in range(8):
            e(f"    v_mov_b32 v{16+q}, 0")

    def acc_fold():
        for r in range(4):
            e(f"    v_add_f32_dpp v{16+r}, v{20+r}, v{16+r} row_ror:8 row_mask:0x3 bank_mask:0xc")
        for r in range(4):
            e(f"    v_add_f32_dpp v{16+r}, v{20+r}, v{16+r} row_ror:8 row_mask:0xc bank_mask:0x3")

    def gather_wd(kks):
        for kk in kks:
            for q in range(4):
                off = L_WD + 768 * kk + 48 * q
                e(f"    ds_read_u16 v{8+2*q}, v63 offset:{off}")
                e(f"    ds_read_u16 v{9+2*q}, v63 offset:{off+24}")
            e("    s_waitcnt lgkmcnt(0)")
            for q in range(4):
                e(f"    v_lshl_or_b32 v{24+4*kk+q}, v{9+2*q}, 16, v{8+2*q}")

    e(f"; @launch grid=(256,1,1) block=(512,1,1) lds={LDS_BYTES}")
    e('.amdgcn_target "amdgcn-amd-amdhsa--gfx950"')
    e(".text")
    e(f".globl {NAME}_kernel")
    e(".p2align 8")
    e(f".type {NAME}_kernel,@function")
    e(f"{NAME}_kernel:")
    e("    s_load_dwordx8 s[4:11], s[0:1], 0")
    e("    s_load_dwordx4 s[12:15], s[0:1], 32")
    stamp(0)
    if P["EMPTY"]:
        e("    s_endpgm")
    e("    s_cmp_ge_u32 s2, 256")
    e("    s_cbranch_scc1 L_end")
    e("    v_and_b32 v2, 63, v0                   ; lane")
    e("    v_lshrrev_b32 v3, 6, v0")
    e("    v_and_b32 v4, 15, v0                   ; j")
    e("    v_bfe_u32 v5, v0, 4, 2                 ; g4")
    e("    v_mul_u32_u24 v1, 768, v5")
    e("    v_lshl_add_u32 v1, v4, 4, v1           ; 768*g4 + 16*j")
    e("    v_readfirstlane_b32 s3, v3")
    e("    v_lshlrev_b32 v6, 4, v0")
    e("    v_mul_u32_u24 v7, 768, v3")
    e("    v_lshl_add_u32 v7, v2, 3, v7")
    if P["MAP"] == "A":
        step = 2048 * 3072
        e("    s_lshl_b32 s33, s2, 3")
        e("    s_add_u32 s33, s33, s3")
        e("    s_mul_i32 s33, s33, 3072")
    elif P["MAP"] == "B":
        step = 8 * 3072
        e("    s_mul_i32 s33, s2, 393216")
        e("    s_mul_i32 s34, s3, 3072")
        e("    s_add_u32 s33, s33, s34")
    elif P["MAP"] == "C":
        step = 3072
        e("    s_lshl_b32 s33, s2, 3")
        e("    s_add_u32 s33, s33, s3")
        e("    s_mul_i32 s33, s33, 49152")
    else:
        raise ValueError
    e("    s_mov_b32 s18, %d" % XBYTES)
    e("    s_mov_b32 s19, 0x00020000")
    e("    s_mov_b32 s22, %d" % XBYTES)
    e("    s_mov_b32 s23, 0x00020000")
    e("    s_mov_b32 s26, 4608")
    e("    s_mov_b32 s27, 0x00020000")
    e("    s_mov_b32 s30, 4608")
    e("    s_mov_b32 s31, 0x00020000")
    e("    s_mov_b32 s32, s33")
    e("    s_waitcnt lgkmcnt(0)")
    e("    s_mov_b32 s16, s4")
    e("    s_mov_b32 s17, s5")
    e("    s_mov_b32 s24, s6")
    e("    s_mov_b32 s25, s7")
    e("    s_mov_b32 s28, s8")
    e("    s_mov_b32 s29, s9")
    e("    s_mov_b32 s20, s10")
    e("    s_mov_b32 s21, s11")
    e("    s_add_u32 s38, s14, 4096")
    e("    s_addc_u32 s39, s15, 0                 ; ws + 4096")
    e("    buffer_load_dwordx4 v[48:51], v6, s[24:27], 0 offen")
    e("    buffer_load_dwordx2 v[52:53], v7, s[28:31], 0 offen")
    e("    buffer_load_dwordx2 v[54:55], v7, s[28:31], 0 offen offset:384")
    e("    v_lshlrev_b32 v3, 4, v2                ; lane*16")
    if P["PRETOUCH"]:
        e("    s_cmp_lg_u32 s3, 0")
        e("    s_cbranch_scc1 L_nopre")
        e("    v_mov_b32 v56, 64")
        e("    v_mov_b32 v57, 32768")
        e("    global_load_dword v58, v56, s[12:13] sc1")
        e("    global_load_dword v59, v57, s[14:15] sc1")
        if P["PRETOUCH"] >= 2:
            e(f"    s_mov_b32 s34, {step}")
            e("    v_mul_lo_u32 v56, v4, s34")
            e("    buffer_load_dword v60, v56, s[20:23], s33 offen sc1")
        e("L_nopre:")
    e("    s_or_b32 s34, s2, s3")
    e("    s_cmp_lg_u32 s34, 0")
    e("    s_cbranch_scc1 L_noinit")
    e("    v_mov_b32 v8, 0")
    e("    v_mov_b32 v9, 0")
    e("    v_mov_b32 v10, 0")
    e("    v_mov_b32 v11, 0")
    for r in range(R):
        b = "s[14:15]" if r < 4 else "s[38:39]"
        e(f"    global_store_dwordx4 v3, v[8:11], {b} offset:{(r % 4) * 1024} sc1")
    e(f"    v_add_u32 v12, {WS_CNT}, v3")
    e("    global_store_dwordx4 v12, v[8:11], s[14:15] sc1")
    e("    global_store_dwordx4 v12, v[8:11], s[14:15] offset:1024 sc1")
    e("    v_mov_b32 v13, 1")
    e("    s_waitcnt vmcnt(0)")
    e("    s_mov_b64 exec, 1")
    e("    global_store_dword v8, v13, s[12:13] sc1")
    e("    s_mov_b64 exec, -1")
    e("L_noinit:")
    for t in range(16):
        for m in range(3):
            i = 3 * t + m
            d = 64 + 4 * i
            e(f"    buffer_load_dwordx4 v[{d}:{d+3}], v1, s[16:19], s32 offen offset:{256*m} {P['LDF']}")
        if t < 15:
            e(f"    s_add_u32 s32, s32, {step}")
    stamp(1)
    build_A()
    e("    s_mov_b32 s34, 0x05040100")
    e("    s_mov_b32 s35, 0x07060302")
    e("    s_waitcnt vmcnt(48)")
    e(f"    ds_write_b128 v6, v[48:51] offset:{L_WD}")
    e("    v_perm_b32 v56, v54, v52, s34")
    e("    v_perm_b32 v57, v54, v52, s35")
    e("    v_perm_b32 v58, v55, v53, s34")
    e("    v_perm_b32 v59, v55, v53, s35")
    e(f"    ds_write_b128 v6, v[56:59] offset:{L_WU}")
    e("    v_mov_b32 v62, 0")
    e("    v_add_u32 v60, 16, v4")
    e("    v_subrev_u32 v61, 24, v60")
    e("    v_min_u32 v60, v60, v61                ; (16+j) mod 24")
    e("    v_lshlrev_b32 v7, 5, v60")
    e(f"    v_add_u32 v7, {L_G}, v7")
    e("    v_lshlrev_b32 v6, 5, v4")
    e(f"    v_add_u32 v6, {L_G}, v6")
    e("    v_lshrrev_b32 v60, 1, v5")
    e("    v_lshlrev_b32 v60, 5, v60")
    e("    v_lshl_add_u32 v60, v4, 1, v60")
    e("    v_and_b32 v61, 1, v5")
    e("    v_add_lshl_u32 v60, v60, v61, 4")
    e("    s_lshl_b32 s34, s3, 10")
    e("    v_add_u32 v60, s34, v60")
    for i in range(48):
        t, m = divmod(i, 3)
        d = 64 + 4 * i
        e(f"    s_waitcnt vmcnt({47-i})")
        if m == 0:
            e(f"    v_mfma_f32_16x16x32_bf16 v[16:19], v[8:11], v[{d}:{d+3}], v[16:19]")
        elif m == 1:
            e(f"    v_mfma_f32_16x16x32_bf16 v[16:19], v[12:15], v[{d}:{d+3}], v[16:19]")
        else:
            e(f"    v_mfma_f32_16x16x32_bf16 v[20:23], v[24:27], v[{d}:{d+3}], v[20:23]")
        if i == P["FLAGPOS"]:
            e("    s_cmp_lg_u32 s3, 0")
            e("    s_cbranch_scc1 L_noflagld")
            e("    global_load_dword v61, v62, s[12:13] sc1")
            e("L_noflagld:")
    stamp(2)
    e("    s_nop 7")
    acc_fold()
    e(f"    ds_write_b128 v60, v[16:19] offset:{L_PART}")
    e("    s_waitcnt lgkmcnt(0)")
    e("    s_barrier                              ; B2")
    e("    s_cmp_lg_u32 s3, 0")
    e("    s_cbranch_scc1 L_wait_g")
    stamp(3)
    e("    v_lshlrev_b32 v60, 2, v2               ; lane*4")
    for n in range(4):
        for wp in range(4):
            d = 8 + 8 * n + 2 * wp
            e(f"    ds_read2st64_b32 v[{d}:{d+1}], v60 offset0:{8*wp+n} offset1:{8*wp+4+n}")
    e(f"    s_and_b32 s34, s2, {R-1}               ; replica")
    e("    s_lshl_b32 s35, s34, 10")
    e("    v_add_u32 v49, s35, v60")
    if P["ARR"] == 2:
        e("    s_and_b32 s35, s2, 7")
        e("    s_lshl_b32 s35, s35, 7")
        e(f"    s_add_u32 s35, s35, {WS_CNT}")
        e("    v_mov_b32 v53, s35")
    e(f"    v_mov_b32 v55, {WS_CNT + 1024}")
    e("    v_mov_b32 v54, 1")
    e("    v_mov_b32 v56, 128")
    e("    v_mul_u32_u24 v63, 192, v5")
    e("    v_lshl_add_u32 v63, v4, 1, v63")
    e(f"    s_mov_b32 s36, {P['POLLMAX']}")
    e("L_flagcheck:")
    e("    s_waitcnt vmcnt(0)")
    e("    v_readfirstlane_b32 s35, v61")
    e("    s_cmp_lg_u32 s35, 0")
    e("    s_cbranch_scc1 L_flagok")
    e("    s_sub_u32 s36, s36, 1")
    e("    s_cbranch_scc1 L_fallback")
    e("    s_sleep 4")
    e("    global_load_dword v61, v62, s[12:13] sc1")
    e("    s_branch L_flagcheck")
    e("L_flagok:")
    stamp(4)
    e("    s_waitcnt lgkmcnt(0)")
    for n in range(4):
        b = 8 + 8 * n
        e(f"    v_pk_add_f32 v[{b}:{b+1}], v[{b}:{b+1}], v[{b+2}:{b+3}]")
        e(f"    v_pk_add_f32 v[{b+4}:{b+5}], v[{b+4}:{b+5}], v[{b+6}:{b+7}]")
    for n in range(4):
        b = 8 + 8 * n
        e(f"    v_pk_add_f32 v[{b}:{b+1}], v[{b}:{b+1}], v[{b+4}:{b+5}]")
    e("    v_pk_add_f32 v[8:9], v[8:9], v[32:33]")
    e("    v_add_f32 v51, v16, v17")
    e("    v_add_f32 v52, v24, v25")
    e("    v_add_f32 v50, v8, v9")
    e("    global_atomic_add_f32 v49, v51, s[14:15] offset:256")
    e("    global_atomic_add_f32 v49, v52, s[14:15] offset:512")
    e("    global_atomic_add_f32 v49, v50, s[14:15]")
    gather_wd([0, 1, 2])
    e("    s_waitcnt vmcnt(0)")
    stamp(5)
    e("    s_mov_b64 exec, 1")
    if P["ARR"] == 2:
        e("    global_atomic_add v57, v53, v54, s[14:15] sc0")
    else:
        e("    global_atomic_add v57, v55, v54, s[14:15] sc0")
    e("    s_mov_b64 exec, -1")
    gather_wd([3, 4, 5])
    e(f"    s_mov_b32 s36, {P['POLLMAX']}")
    if P["FORCE_FALLBACK"]:
        e("    s_branch L_fallback")
    e("    s_waitcnt vmcnt(0)")
    e("    v_readfirstlane_b32 s35, v57")
    if P["ARR"] == 2:
        e("    s_cmp_lg_u32 s35, 31")
        e("    s_cbranch_scc1 L_poll")
        e("    s_mov_b64 exec, 1")
        e("    global_atomic_add v57, v55, v54, s[14:15] sc0")
        e("    s_mov_b64 exec, -1")
        e("    s_waitcnt vmcnt(0)")
        e("    v_readfirstlane_b32 s35, v57")
        e("    s_cmp_lg_u32 s35, 7")
    else:
        e("    s_cmp_lg_u32 s35, 255")
    e("    s_cbranch_scc1 L_poll")
    e("    s_mov_b64 exec, 1")
    e("    global_store_dword v56, v54, s[12:13] sc1")
    e("    s_mov_b64 exec, -1")
    e("    s_branch L_pollok")
    e("L_poll:")
    e("    global_load_dword v57, v56, s[12:13] sc1")
    e("    s_waitcnt vmcnt(0)")
    e("    v_readfirstlane_b32 s35, v57")
    e("    s_cmp_lg_u32 s35, 0")
    e("    s_cbranch_scc1 L_pollok")
    if P["SLEEP"]:
        e(f"    s_sleep {P['SLEEP']}")
    e("    s_sub_u32 s36, s36, 1")
    e("    s_cbranch_scc0 L_poll")
    e("    s_branch L_fallback")
    e("L_pollok:")
    stamp(6)
    rep_regs = [8, 12, 16, 20, 48, 52, 56, 60]
    for r in range(R):
        d = rep_regs[r]
        b = "s[14:15]" if r < 4 else "s[38:39]"
        e(f"    global_load_dwordx4 v[{d}:{d+3}], v3, {b} offset:{(r % 4) * 1024} sc1")
    for r in range(1, R):
        e(f"    s_waitcnt vmcnt({R-1-r})")
        d = rep_regs[r]
        e(f"    v_pk_add_f32 v[8:9], v[8:9], v[{d}:{d+1}]")
        e(f"    v_pk_add_f32 v[10:11], v[10:11], v[{d+2}:{d+3}]")
    if R == 1:
        e("    s_waitcnt vmcnt(0)")
    e("L_mlp:")
    stamp(7)
    e("    v_mul_f32 v8, 0x36800000, v8           ; * 2^-18")
    e("    v_mul_f32 v9, 0x36800000, v9")
    e("    v_mul_f32 v10, 0x36800000, v10")
    e("    v_mul_f32 v11, 0x36800000, v11")
    e("    v_cvt_pk_bf16_f32 v8, v8, v9")
    e("    v_cvt_pk_bf16_f32 v9, v10, v11")
    e("    v_lshlrev_b32 v10, 3, v2")
    e(f"    ds_write_b64 v10, v[8:9] offset:{L_S}")
    e("    v_lshlrev_b32 v10, 4, v5               ; 16*g4")
    sregs = [12, 16, 20, 48, 52, 56]
    for kk in range(6):
        d = sregs[kk]
        e(f"    ds_read_b128 v[{d}:{d+3}], v10 offset:{L_S + 64*kk}")
    for kk in range(6):
        d = sregs[kk]
        w = 24 + 4 * kk
        e(f"    s_waitcnt lgkmcnt({5-kk})" if not P["DIAG"] else "    s_waitcnt lgkmcnt(0)")
        c = "0" if kk == 0 else "v[8:11]"
        e(f"    v_mfma_f32_16x16x32_bf16 v[8:11], v[{d}:{d+3}], v[{w}:{w+3}], {c}")
    for p in range(6):
        e(f"    ds_read_b128 v[{24+4*p}:{27+4*p}], v3 offset:{L_WU + 1024*p}")
    e("    s_mov_b32 s34, 0xbfb8aa3b              ; -log2(e)")
    e("    s_mov_b32 s35, 0xbfb8aa3b")
    e("    s_nop 1")
    e("    v_cvt_pk_bf16_f32 v8, v8, v8")
    e("    v_lshlrev_b32 v8, 16, v8")
    e("    v_mul_f32 v9, s34, v8")
    e("    v_exp_f32 v9, v9")
    e("    s_nop 0")
    e("    v_add_f32 v9, 1.0, v9")
    e("    v_rcp_f32 v9, v9")
    e("    s_nop 0")
    e("    v_mul_f32 v8, v8, v9                   ; silu")
    e("    s_nop 1")
    e("    v_mov_b32_dpp v9, v8 quad_perm:[1,0,3,2] row_mask:0xf bank_mask:0xf")
    e("    v_cvt_pk_bf16_f32 v8, v8, v9           ; even lanes: {h[j], h[j+1]}")
    e("    s_nop 0")
    for p in range(6):
        e(f"    v_readlane_b32 s{64+p}, v8, {2*p}")
    e("    s_waitcnt lgkmcnt(0)")
    for p in range(6):
        for n in range(4):
            c = "0" if p == 0 else f"v{12+n}"
            e(f"    v_dot2_f32_bf16 v{12+n}, v{24+4*p+n}, s{64+p}, {c}")
    e("    s_nop 2")
    e("    v_cvt_pk_bf16_f32 v8, v12, v13")
    e("    v_cvt_pk_bf16_f32 v9, v14, v15")
    e("    v_lshlrev_b32 v12, 16, v8")
    e("    v_and_b32 v13, 0xffff0000, v8")
    e("    v_lshlrev_b32 v14, 16, v9")
    e("    v_and_b32 v15, 0xffff0000, v9")
    e("    v_pk_mul_f32 v[12:13], v[12:13], s[34:35]")
    e("    v_pk_mul_f32 v[14:15], v[14:15], s[34:35]")
    for n in range(4):
        e(f"    v_exp_f32 v{12+n}, v{12+n}")
    e("    s_nop 0")
    for n in range(4):
        e(f"    v_add_f32 v{12+n}, 1.0, v{12+n}")
    for n in range(4):
        e(f"    v_rcp_f32 v{12+n}, v{12+n}")
    e("    s_nop 0")
    e("    v_cvt_pk_bf16_f32 v8, v12, v13")
    e("    v_cvt_pk_bf16_f32 v9, v14, v15")
    e("    v_lshlrev_b32 v12, 16, v8")
    e("    v_and_b32 v13, 0xffff0000, v8")
    e("    v_lshlrev_b32 v14, 16, v9")
    e("    v_and_b32 v15, 0xffff0000, v9")
    e(f"    ds_write_b128 v3, v[12:15] offset:{L_G}")
    e("    s_waitcnt lgkmcnt(0)")
    stamp(8)
    e("L_wait_g:")
    e("    s_barrier                              ; B3")
    e("    ds_read_b128 v[24:27], v6")
    e("    ds_read_b128 v[28:31], v6 offset:16")
    e("    ds_read_b128 v[32:35], v7")
    e("    ds_read_b128 v[36:39], v7 offset:16")
    e("    ds_read_b128 v[40:43], v6 offset:256")
    e("    ds_read_b128 v[44:47], v6 offset:272")
    e("    s_mov_b32 s34, 0xffff0000")
    e("    s_mov_b32 s32, s33")
    e("    s_waitcnt lgkmcnt(0)")
    for t in range(16):
        for m in range(3):
            i = 3 * t + m
            d = 64 + 4 * i
            g = 24 + 8 * m
            tb = 8 + 8 * (i % 2)
            for q in range(4):
                e(f"    v_lshlrev_b32 v{tb+2*q}, 16, v{d+q}")
                e(f"    v_and_b32 v{tb+2*q+1}, s34, v{d+q}")
            for q in range(4):
                e(f"    v_pk_mul_f32 v[{tb+2*q}:{tb+2*q+1}], v[{tb+2*q}:{tb+2*q+1}], v[{g+2*q}:{g+2*q+1}]")
            for q in range(4):
                e(f"    v_cvt_pk_bf16_f32 v{d+q}, v{tb+2*q}, v{tb+2*q+1}")
            e(f"    buffer_store_dwordx4 v[{d}:{d+3}], v1, s[20:23], s32 offen offset:{256*m} {P['STF']}")
        if t < 15:
            e(f"    s_add_u32 s32, s32, {step}")
    if P["DIAG"]:
        stamp(9)
        e("    s_waitcnt vmcnt(0)")
        stamp(10)
        e("    s_lshl_b32 s34, s2, 3")
        e("    s_add_u32 s34, s34, s3")
        e("    s_lshl_b32 s34, s34, 6")
        e(f"    s_add_u32 s34, s34, {WS_DIAG}")
        e("    v_mov_b32 v8, s34")
        e("    s_waitcnt lgkmcnt(0)")
        e("    s_mov_b64 exec, 1")
        for k in range(11):
            e(f"    v_mov_b32 v{12+k}, s{40+2*k}")
        e("    v_mov_b32 v23, s36")
        e("    s_getreg_b32 s34, hwreg(HW_REG_XCC_ID)")
        e("    s_getreg_b32 s35, hwreg(HW_REG_HW_ID)")
        e("    v_mov_b32 v24, s34")
        e("    v_mov_b32 v25, s35")
        e("    global_store_dwordx4 v8, v[12:15], s[14:15]")
        e("    global_store_dwordx4 v8, v[16:19], s[14:15] offset:16")
        e("    global_store_dwordx4 v8, v[20:23], s[14:15] offset:32")
        e("    global_store_dwordx2 v8, v[24:25], s[14:15] offset:48")
    e("L_end:")
    e("    s_endpgm")
    e("L_fallback:")
    e("    s_waitcnt vmcnt(0) lgkmcnt(0)")
    build_A()
    e("    s_mov_b32 s36, 0")
    e("L_fb_loop:")
    e("    buffer_load_dwordx4 v[48:51], v1, s[16:19], s36 offen")
    e("    buffer_load_dwordx4 v[52:55], v1, s[16:19], s36 offen offset:256")
    e("    buffer_load_dwordx4 v[56:59], v1, s[16:19], s36 offen offset:512")
    e("    s_waitcnt vmcnt(0)")
    e("    v_mfma_f32_16x16x32_bf16 v[16:19], v[8:11], v[48:51], v[16:19]")
    e("    v_mfma_f32_16x16x32_bf16 v[16:19], v[12:15], v[52:55], v[16:19]")
    e("    v_mfma_f32_16x16x32_bf16 v[20:23], v[24:27], v[56:59], v[20:23]")
    e("    s_add_u32 s36, s36, 3072")
    e(f"    s_cmp_lt_u32 s36, {XBYTES}")
    e("    s_cbranch_scc1 L_fb_loop")
    e("    s_nop 7")
    acc_fold()
    e("    v_lshrrev_b32 v60, 1, v5")
    e("    v_lshlrev_b32 v60, 5, v60")
    e("    v_lshl_add_u32 v60, v4, 1, v60")
    e("    v_and_b32 v61, 1, v5")
    e("    v_add_lshl_u32 v60, v60, v61, 4")
    e(f"    ds_write_b128 v60, v[16:19] offset:{L_PART}")
    e("    v_mul_u32_u24 v63, 192, v5")
    e("    v_lshl_add_u32 v63, v4, 1, v63")
    gather_wd(range(6))
    e(f"    ds_read_b128 v[8:11], v3 offset:{L_PART}")
    e(f"    ds_read_b128 v[12:15], v3 offset:{L_PART + 768}")
    e("    s_waitcnt lgkmcnt(0)")
    e("    s_mov_b64 exec, 0xffff")
    e("    v_pk_add_f32 v[8:9], v[8:9], v[12:13]")
    e("    v_pk_add_f32 v[10:11], v[10:11], v[14:15]")
    e("    s_mov_b64 exec, -1")
    e("    s_branch L_mlp")
    e('.section .rodata,"a"')
    e(".p2align 6")
    e(f".amdhsa_kernel {NAME}_kernel")
    e("  .amdhsa_next_free_vgpr 256")
    e("  .amdhsa_next_free_sgpr 80")
    e("  .amdhsa_accum_offset 256")
    e("  .amdhsa_group_segment_fixed_size 0")
    e("  .amdhsa_kernarg_size 48")
    e("  .amdhsa_user_sgpr_count 2")
    e("  .amdhsa_user_sgpr_kernarg_segment_ptr 1")
    e("  .amdhsa_system_sgpr_workgroup_id_x 1")
    e("  .amdhsa_float_denorm_mode_32 3")
    e("  .amdhsa_float_denorm_mode_16_64 3")
    e(".end_amdhsa_kernel")
    return "\n".join(o) + "\n"


def parse_args(argv):
    out = None
    kw = {}
    for a in argv:
        if "=" in a:
            k, v = a.split("=", 1)
            try:
                v = int(v)
            except ValueError:
                v = v.replace("+", " ")
            kw[k] = v
        else:
            out = a
    return out, kw


if __name__ == "__main__":
    out, kw = parse_args(sys.argv[1:])
    txt = gen(**kw)
    if out:
        open(out, "w").write(txt)
    else:
        sys.stdout.write(txt)
```

```python
import sys

NAME = "standalone__channel_attn_se__vision"
XBYTES = 512 * 512 * 192 * 2

DEFAULTS = dict(
    MAP="A",
    LDF="nt",
    STF="nt",
    R=8,
    DIAG=0,
    FLAGPOS=40,
    SLEEP=0,
    POLLMAX=8192,
    FORCE_FALLBACK=0,
    PRETOUCH=2,
    EMPTY=0,
    ARR=1,
)

L_PART = 0x0000
L_S = 0x2000
L_G = 0x2400
L_WD = 0x3000
L_WU = 0x5000
LDS_BYTES = 0x7000

WS_CNT = 16384
WS_DIAG = 65536


def gen(**kw):
    P = dict(DEFAULTS)
    P.update(kw)
    R = P["R"]
    assert R in (1, 2, 4, 8)
    o = []
    e = o.append

    def stamp(k):
        if P["DIAG"]:
            e(f"    s_memrealtime s[{40+2*k}:{41+2*k}]")

    def build_A():
        e("    v_and_b32 v16, 1, v4")
        e("    v_cmp_eq_u32 vcc, 1, v16")
        e("    v_mov_b32 v17, 0x3f80")
        e("    v_mov_b32 v18, 0x3f800000")
        e("    v_cndmask_b32 v17, v17, v18, vcc")
        e("    v_lshrrev_b32 v16, 1, v4               ; j>>1")
        for q in range(8):
            e(f"    v_cmp_eq_u32 vcc, {q}, v16")
            e("    s_nop 1")
            e(f"    v_cndmask_b32 v{8+q}, 0, v17, vcc")
        for q in range(4):
            e(f"    v_or_b32 v{24+q}, v{8+q}, v{12+q}")
        for q in range(8):
            e(f"    v_mov_b32 v{16+q}, 0")

    def acc_fold():
        for r in range(4):
            e(f"    v_add_f32_dpp v{16+r}, v{20+r}, v{16+r} row_ror:8 row_mask:0x3 bank_mask:0xc")
        for r in range(4):
            e(f"    v_add_f32_dpp v{16+r}, v{20+r}, v{16+r} row_ror:8 row_mask:0xc bank_mask:0x3")

    def gather_wd(kks):
        for kk in kks:
            for q in range(4):
                off = L_WD + 768 * kk + 48 * q
                e(f"    ds_read_u16 v{8+2*q}, v63 offset:{off}")
                e(f"    ds_read_u16 v{9+2*q}, v63 offset:{off+24}")
            e("    s_waitcnt lgkmcnt(0)")
            for q in range(4):
                e(f"    v_lshl_or_b32 v{24+4*kk+q}, v{9+2*q}, 16, v{8+2*q}")

    e(f"; @launch grid=(256,1,1) block=(512,1,1) lds={LDS_BYTES}")
    e('.amdgcn_target "amdgcn-amd-amdhsa--gfx950"')
    e(".text")
    e(f".globl {NAME}_kernel")
    e(".p2align 8")
    e(f".type {NAME}_kernel,@function")
    e(f"{NAME}_kernel:")
    e("    s_load_dwordx8 s[4:11], s[0:1], 0")
    e("    s_load_dwordx4 s[12:15], s[0:1], 32")
    stamp(0)
    if P["EMPTY"]:
        e("    s_endpgm")
    e("    s_cmp_ge_u32 s2, 256")
    e("    s_cbranch_scc1 L_end")
    e("    v_and_b32 v2, 63, v0                   ; lane")
    e("    v_lshrrev_b32 v3, 6, v0")
    e("    v_and_b32 v4, 15, v0                   ; j")
    e("    v_bfe_u32 v5, v0, 4, 2                 ; g4")
    e("    v_mul_u32_u24 v1, 768, v5")
    e("    v_lshl_add_u32 v1, v4, 4, v1           ; 768*g4 + 16*j")
    e("    v_readfirstlane_b32 s3, v3")
    e("    v_lshlrev_b32 v6, 4, v0")
    e("    v_mul_u32_u24 v7, 768, v3")
    e("    v_lshl_add_u32 v7, v2, 3, v7")
    if P["MAP"] == "A":
        step = 2048 * 3072
        e("    s_lshl_b32 s33, s2, 3")
        e("    s_add_u32 s33, s33, s3")
        e("    s_mul_i32 s33, s33, 3072")
    elif P["MAP"] == "B":
        step = 8 * 3072
        e("    s_mul_i32 s33, s2, 393216")
        e("    s_mul_i32 s34, s3, 3072")
        e("    s_add_u32 s33, s33, s34")
    elif P["MAP"] == "C":
        step = 3072
        e("    s_lshl_b32 s33, s2, 3")
        e("    s_add_u32 s33, s33, s3")
        e("    s_mul_i32 s33, s33, 49152")
    else:
        raise ValueError
    e("    s_mov_b32 s18, %d" % XBYTES)
    e("    s_mov_b32 s19, 0x00020000")
    e("    s_mov_b32 s22, %d" % XBYTES)
    e("    s_mov_b32 s23, 0x00020000")
    e("    s_mov_b32 s26, 4608")
    e("    s_mov_b32 s27, 0x00020000")
    e("    s_mov_b32 s30, 4608")
    e("    s_mov_b32 s31, 0x00020000")
    e("    s_mov_b32 s32, s33")
    e("    s_waitcnt lgkmcnt(0)")
    e("    s_mov_b32 s16, s4")
    e("    s_mov_b32 s17, s5")
    e("    s_mov_b32 s24, s6")
    e("    s_mov_b32 s25, s7")
    e("    s_mov_b32 s28, s8")
    e("    s_mov_b32 s29, s9")
    e("    s_mov_b32 s20, s10")
    e("    s_mov_b32 s21, s11")
    e("    s_add_u32 s38, s14, 4096")
    e("    s_addc_u32 s39, s15, 0                 ; ws + 4096")
    e("    buffer_load_dwordx4 v[48:51], v6, s[24:27], 0 offen")
    e("    buffer_load_dwordx2 v[52:53], v7, s[28:31], 0 offen")
    e("    buffer_load_dwordx2 v[54:55], v7, s[28:31], 0 offen offset:384")
    e("    v_lshlrev_b32 v3, 4, v2                ; lane*16")
    if P["PRETOUCH"]:
        e("    s_cmp_lg_u32 s3, 0")
        e("    s_cbranch_scc1 L_nopre")
        e("    v_mov_b32 v56, 64")
        e("    v_mov_b32 v57, 32768")
        e("    global_load_dword v58, v56, s[12:13] sc1")
        e("    global_load_dword v59, v57, s[14:15] sc1")
        if P["PRETOUCH"] >= 2:
            e(f"    s_mov_b32 s34, {step}")
            e("    v_mul_lo_u32 v56, v4, s34")
            e("    buffer_load_dword v60, v56, s[20:23], s33 offen sc1")
        e("L_nopre:")
    e("    s_or_b32 s34, s2, s3")
    e("    s_cmp_lg_u32 s34, 0")
    e("    s_cbranch_scc1 L_noinit")
    e("    v_mov_b32 v8, 0")
    e("    v_mov_b32 v9, 0")
    e("    v_mov_b32 v10, 0")
    e("    v_mov_b32 v11, 0")
    for r in range(R):
        b = "s[14:15]" if r < 4 else "s[38:39]"
        e(f"    global_store_dwordx4 v3, v[8:11], {b} offset:{(r % 4) * 1024} sc1")
    e(f"    v_add_u32 v12, {WS_CNT}, v3")
    e("    global_store_dwordx4 v12, v[8:11], s[14:15] sc1")
    e("    global_store_dwordx4 v12, v[8:11], s[14:15] offset:1024 sc1")
    e("    v_mov_b32 v13, 1")
    e("    s_waitcnt vmcnt(0)")
    e("    s_mov_b64 exec, 1")
    e("    global_store_dword v8, v13, s[12:13] sc1")
    e("    s_mov_b64 exec, -1")
    e("L_noinit:")
    for t in range(16):
        for m in range(3):
            i = 3 * t + m
            d = 64 + 4 * i
            e(f"    buffer_load_dwordx4 v[{d}:{d+3}], v1, s[16:19], s32 offen offset:{256*m} {P['LDF']}")
        if t < 15:
            e(f"    s_add_u32 s32, s32, {step}")
    stamp(1)
    build_A()
    e("    s_mov_b32 s34, 0x05040100")
    e("    s_mov_b32 s35, 0x07060302")
    e("    s_waitcnt vmcnt(48)")
    e(f"    ds_write_b128 v6, v[48:51] offset:{L_WD}")
    e("    v_perm_b32 v56, v54, v52, s34")
    e("    v_perm_b32 v57, v54, v52, s35")
    e("    v_perm_b32 v58, v55, v53, s34")
    e("    v_perm_b32 v59, v55, v53, s35")
    e(f"    ds_write_b128 v6, v[56:59] offset:{L_WU}")
    e("    v_mov_b32 v62, 0")
    e("    v_add_u32 v60, 16, v4")
    e("    v_subrev_u32 v61, 24, v60")
    e("    v_min_u32 v60, v60, v61                ; (16+j) mod 24")
    e("    v_lshlrev_b32 v7, 5, v60")
    e(f"    v_add_u32 v7, {L_G}, v7")
    e("    v_lshlrev_b32 v6, 5, v4")
    e(f"    v_add_u32 v6, {L_G}, v6")
    e("    v_lshrrev_b32 v60, 1, v5")
    e("    v_lshlrev_b32 v60, 5, v60")
    e("    v_lshl_add_u32 v60, v4, 1, v60")
    e("    v_and_b32 v61, 1, v5")
    e("    v_add_lshl_u32 v60, v60, v61, 4")
    e("    s_lshl_b32 s34, s3, 10")
    e("    v_add_u32 v60, s34, v60")
    for i in range(48):
        t, m = divmod(i, 3)
        d = 64 + 4 * i
        e(f"    s_waitcnt vmcnt({47-i})")
        if m == 0:
            e(f"    v_mfma_f32_16x16x32_bf16 v[16:19], v[8:11], v[{d}:{d+3}], v[16:19]")
        elif m == 1:
            e(f"    v_mfma_f32_16x16x32_bf16 v[16:19], v[12:15], v[{d}:{d+3}], v[16:19]")
        else:
            e(f"    v_mfma_f32_16x16x32_bf16 v[20:23], v[24:27], v[{d}:{d+3}], v[20:23]")
        if i == P["FLAGPOS"]:
            e("    s_cmp_lg_u32 s3, 0")
            e("    s_cbranch_scc1 L_noflagld")
            e("    global_load_dword v61, v62, s[12:13] sc1")
            e("L_noflagld:")
    stamp(2)
    e("    s_nop 7")
    acc_fold()
    e(f"    ds_write_b128 v60, v[16:19] offset:{L_PART}")
    e("    s_waitcnt lgkmcnt(0)")
    e("    s_barrier                              ; B2")
    e("    s_cmp_lg_u32 s3, 0")
    e("    s_cbranch_scc1 L_wait_g")
    stamp(3)
    e("    v_lshlrev_b32 v60, 2, v2               ; lane*4")
    for n in range(4):
        for wp in range(4):
            d = 8 + 8 * n + 2 * wp
            e(f"    ds_read2st64_b32 v[{d}:{d+1}], v60 offset0:{8*wp+n} offset1:{8*wp+4+n}")
    e(f"    s_and_b32 s34, s2, {R-1}               ; replica")
    e("    s_lshl_b32 s35, s34, 10")
    e("    v_add_u32 v49, s35, v60")
    if P["ARR"] == 2:
        e("    s_and_b32 s35, s2, 7")
        e("    s_lshl_b32 s35, s35, 7")
        e(f"    s_add_u32 s35, s35, {WS_CNT}")
        e("    v_mov_b32 v53, s35")
    e(f"    v_mov_b32 v55, {WS_CNT + 1024}")
    e("    v_mov_b32 v54, 1")
    e("    v_mov_b32 v56, 128")
    e("    v_mul_u32_u24 v63, 192, v5")
    e("    v_lshl_add_u32 v63, v4, 1, v63")
    e(f"    s_mov_b32 s36, {P['POLLMAX']}")
    e("L_flagcheck:")
    e("    s_waitcnt vmcnt(0)")
    e("    v_readfirstlane_b32 s35, v61")
    e("    s_cmp_lg_u32 s35, 0")
    e("    s_cbranch_scc1 L_flagok")
    e("    s_sub_u32 s36, s36, 1")
    e("    s_cbranch_scc1 L_fallback")
    e("    s_sleep 4")
    e("    global_load_dword v61, v62, s[12:13] sc1")
    e("    s_branch L_flagcheck")
    e("L_flagok:")
    stamp(4)
    e("    s_waitcnt lgkmcnt(0)")
    for n in range(4):
        b = 8 + 8 * n
        e(f"    v_pk_add_f32 v[{b}:{b+1}], v[{b}:{b+1}], v[{b+2}:{b+3}]")
        e(f"    v_pk_add_f32 v[{b+4}:{b+5}], v[{b+4}:{b+5}], v[{b+6}:{b+7}]")
    for n in range(4):
        b = 8 + 8 * n
        e(f"    v_pk_add_f32 v[{b}:{b+1}], v[{b}:{b+1}], v[{b+4}:{b+5}]")
    e("    v_pk_add_f32 v[8:9], v[8:9], v[32:33]")
    e("    v_add_f32 v51, v16, v17")
    e("    v_add_f32 v52, v24, v25")
    e("    v_add_f32 v50, v8, v9")
    e("    global_atomic_add_f32 v49, v51, s[14:15] offset:256")
    e("    global_atomic_add_f32 v49, v52, s[14:15] offset:512")
    e("    global_atomic_add_f32 v49, v50, s[14:15]")
    gather_wd([0, 1, 2])
    e("    s_waitcnt vmcnt(0)")
    stamp(5)
    e("    s_mov_b64 exec, 1")
    if P["ARR"] == 2:
        e("    global_atomic_add v57, v53, v54, s[14:15] sc0")
    else:
        e("    global_atomic_add v57, v55, v54, s[14:15] sc0")
    e("    s_mov_b64 exec, -1")
    gather_wd([3, 4, 5])
    e(f"    s_mov_b32 s36, {P['POLLMAX']}")
    if P["FORCE_FALLBACK"]:
        e("    s_branch L_fallback")
    e("    s_waitcnt vmcnt(0)")
    e("    v_readfirstlane_b32 s35, v57")
    if P["ARR"] == 2:
        e("    s_cmp_lg_u32 s35, 31")
        e("    s_cbranch_scc1 L_poll")
        e("    s_mov_b64 exec, 1")
        e("    global_atomic_add v57, v55, v54, s[14:15] sc0")
        e("    s_mov_b64 exec, -1")
        e("    s_waitcnt vmcnt(0)")
        e("    v_readfirstlane_b32 s35, v57")
        e("    s_cmp_lg_u32 s35, 7")
    else:
        e("    s_cmp_lg_u32 s35, 255")
    e("    s_cbranch_scc1 L_poll")
    e("    s_mov_b64 exec, 1")
    e("    global_store_dword v56, v54, s[12:13] sc1")
    e("    s_mov_b64 exec, -1")
    e("    s_branch L_pollok")
    e("L_poll:")
    e("    global_load_dword v57, v56, s[12:13] sc1")
    e("    s_waitcnt vmcnt(0)")
    e("    v_readfirstlane_b32 s35, v57")
    e("    s_cmp_lg_u32 s35, 0")
    e("    s_cbranch_scc1 L_pollok")
    if P["SLEEP"]:
        e(f"    s_sleep {P['SLEEP']}")
    e("    s_sub_u32 s36, s36, 1")
    e("    s_cbranch_scc0 L_poll")
    e("    s_branch L_fallback")
    e("L_pollok:")
    stamp(6)
    rep_regs = [8, 12, 16, 20, 48, 52, 56, 60]
    for r in range(R):
        d = rep_regs[r]
        b = "s[14:15]" if r < 4 else "s[38:39]"
        e(f"    global_load_dwordx4 v[{d}:{d+3}], v3, {b} offset:{(r % 4) * 1024} sc1")
    for r in range(1, R):
        e(f"    s_waitcnt vmcnt({R-1-r})")
        d = rep_regs[r]
        e(f"    v_pk_add_f32 v[8:9], v[8:9], v[{d}:{d+1}]")
        e(f"    v_pk_add_f32 v[10:11], v[10:11], v[{d+2}:{d+3}]")
    if R == 1:
        e("    s_waitcnt vmcnt(0)")
    e("L_mlp:")
    stamp(7)
    e("    v_mul_f32 v8, 0x36800000, v8           ; * 2^-18")
    e("    v_mul_f32 v9, 0x36800000, v9")
    e("    v_mul_f32 v10, 0x36800000, v10")
    e("    v_mul_f32 v11, 0x36800000, v11")
    e("    v_cvt_pk_bf16_f32 v8, v8, v9")
    e("    v_cvt_pk_bf16_f32 v9, v10, v11")
    e("    v_lshlrev_b32 v10, 3, v2")
    e(f"    ds_write_b64 v10, v[8:9] offset:{L_S}")
    e("    v_lshlrev_b32 v10, 4, v5               ; 16*g4")
    sregs = [12, 16, 20, 48, 52, 56]
    for kk in range(6):
        d = sregs[kk]
        e(f"    ds_read_b128 v[{d}:{d+3}], v10 offset:{L_S + 64*kk}")
    for kk in range(6):
        d = sregs[kk]
        w = 24 + 4 * kk
        e(f"    s_waitcnt lgkmcnt({5-kk})" if not P["DIAG"] else "    s_waitcnt lgkmcnt(0)")
        c = "0" if kk == 0 else "v[8:11]"
        e(f"    v_mfma_f32_16x16x32_bf16 v[8:11], v[{d}:{d+3}], v[{w}:{w+3}], {c}")
    for p in range(6):
        e(f"    ds_read_b128 v[{24+4*p}:{27+4*p}], v3 offset:{L_WU + 1024*p}")
    e("    s_mov_b32 s34, 0xbfb8aa3b              ; -log2(e)")
    e("    s_mov_b32 s35, 0xbfb8aa3b")
    e("    s_nop 1")
    e("    v_cvt_pk_bf16_f32 v8, v8, v8")
    e("    v_lshlrev_b32 v8, 16, v8")
    e("    v_mul_f32 v9, s34, v8")
    e("    v_exp_f32 v9, v9")
    e("    s_nop 0")
    e("    v_add_f32 v9, 1.0, v9")
    e("    v_rcp_f32 v9, v9")
    e("    s_nop 0")
    e("    v_mul_f32 v8, v8, v9                   ; silu")
    e("    s_nop 1")
    e("    v_mov_b32_dpp v9, v8 quad_perm:[1,0,3,2] row_mask:0xf bank_mask:0xf")
    e("    v_cvt_pk_bf16_f32 v8, v8, v9           ; even lanes: {h[j], h[j+1]}")
    e("    s_nop 0")
    for p in range(6):
        e(f"    v_readlane_b32 s{64+p}, v8, {2*p}")
    e("    s_waitcnt lgkmcnt(0)")
    for p in range(6):
        for n in range(4):
            c = "0" if p == 0 else f"v{12+n}"
            e(f"    v_dot2_f32_bf16 v{12+n}, v{24+4*p+n}, s{64+p}, {c}")
    e("    s_nop 2")
    e("    v_cvt_pk_bf16_f32 v8, v12, v13")
    e("    v_cvt_pk_bf16_f32 v9, v14, v15")
    e("    v_lshlrev_b32 v12, 16, v8")
    e("    v_and_b32 v13, 0xffff0000, v8")
    e("    v_lshlrev_b32 v14, 16, v9")
    e("    v_and_b32 v15, 0xffff0000, v9")
    e("    v_pk_mul_f32 v[12:13], v[12:13], s[34:35]")
    e("    v_pk_mul_f32 v[14:15], v[14:15], s[34:35]")
    for n in range(4):
        e(f"    v_exp_f32 v{12+n}, v{12+n}")
    e("    s_nop 0")
    for n in range(4):
        e(f"    v_add_f32 v{12+n}, 1.0, v{12+n}")
    for n in range(4):
        e(f"    v_rcp_f32 v{12+n}, v{12+n}")
    e("    s_nop 0")
    e("    v_cvt_pk_bf16_f32 v8, v12, v13")
    e("    v_cvt_pk_bf16_f32 v9, v14, v15")
    e("    v_lshlrev_b32 v12, 16, v8")
    e("    v_and_b32 v13, 0xffff0000, v8")
    e("    v_lshlrev_b32 v14, 16, v9")
    e("    v_and_b32 v15, 0xffff0000, v9")
    e(f"    ds_write_b128 v3, v[12:15] offset:{L_G}")
    e("    s_waitcnt lgkmcnt(0)")
    stamp(8)
    e("L_wait_g:")
    e("    s_barrier                              ; B3")
    e("    ds_read_b128 v[24:27], v6")
    e("    ds_read_b128 v[28:31], v6 offset:16")
    e("    ds_read_b128 v[32:35], v7")
    e("    ds_read_b128 v[36:39], v7 offset:16")
    e("    ds_read_b128 v[40:43], v6 offset:256")
    e("    ds_read_b128 v[44:47], v6 offset:272")
    e("    s_mov_b32 s34, 0xffff0000")
    e("    s_mov_b32 s32, s33")
    e("    s_waitcnt lgkmcnt(0)")
    for t in range(16):
        for m in range(3):
            i = 3 * t + m
            d = 64 + 4 * i
            g = 24 + 8 * m
            tb = 8 + 8 * (i % 2)
            for q in range(4):
                e(f"    v_lshlrev_b32 v{tb+2*q}, 16, v{d+q}")
                e(f"    v_and_b32 v{tb+2*q+1}, s34, v{d+q}")
            for q in range(4):
                e(f"    v_pk_mul_f32 v[{tb+2*q}:{tb+2*q+1}], v[{tb+2*q}:{tb+2*q+1}], v[{g+2*q}:{g+2*q+1}]")
            for q in range(4):
                e(f"    v_cvt_pk_bf16_f32 v{d+q}, v{tb+2*q}, v{tb+2*q+1}")
            e(f"    buffer_store_dwordx4 v[{d}:{d+3}], v1, s[20:23], s32 offen offset:{256*m} {P['STF']}")
        if t < 15:
            e(f"    s_add_u32 s32, s32, {step}")
    if P["DIAG"]:
        stamp(9)
        e("    s_waitcnt vmcnt(0)")
        stamp(10)
        e("    s_lshl_b32 s34, s2, 3")
        e("    s_add_u32 s34, s34, s3")
        e("    s_lshl_b32 s34, s34, 6")
        e(f"    s_add_u32 s34, s34, {WS_DIAG}")
        e("    v_mov_b32 v8, s34")
        e("    s_waitcnt lgkmcnt(0)")
        e("    s_mov_b64 exec, 1")
        for k in range(11):
            e(f"    v_mov_b32 v{12+k}, s{40+2*k}")
        e("    v_mov_b32 v23, s36")
        e("    s_getreg_b32 s34, hwreg(HW_REG_XCC_ID)")
        e("    s_getreg_b32 s35, hwreg(HW_REG_HW_ID)")
        e("    v_mov_b32 v24, s34")
        e("    v_mov_b32 v25, s35")
        e("    global_store_dwordx4 v8, v[12:15], s[14:15]")
        e("    global_store_dwordx4 v8, v[16:19], s[14:15] offset:16")
        e("    global_store_dwordx4 v8, v[20:23], s[14:15] offset:32")
        e("    global_store_dwordx2 v8, v[24:25], s[14:15] offset:48")
    if P["DIAG"] == 2:
        e("    s_mov_b64 exec, -1")
        e("    v_mov_b32 v8, 0")
        e("    s_not_b32 s34, s40")
        e("    v_writelane_b32 v8, s34, 1")
        for k in (0, 1, 2, 9, 10):
            e(f"    v_writelane_b32 v8, s{40+2*k}, {2+k}")
        e("    s_not_b32 s34, s60")
        e("    v_writelane_b32 v8, s34, 13")
        e("    s_cmp_lg_u32 s3, 0")
        e("    s_cbranch_scc1 L_d2")
        for k in (3, 4, 5, 6, 7, 8):
            e(f"    v_writelane_b32 v8, s{40+2*k}, {2+k}")
        e("    s_not_b32 s34, s46")
        e("    v_writelane_b32 v8, s34, 14            ; min B2")
        e("L_d2:")
        e("    v_lshlrev_b32 v9, 2, v2")
        e("    s_mov_b64 exec, 0xfffe")
        e("    global_atomic_umax v9, v8, s[12:13]")
    e("L_end:")
    e("    s_endpgm")
    e("L_fallback:")
    e("    s_waitcnt vmcnt(0) lgkmcnt(0)")
    build_A()
    e("    s_mov_b32 s36, 0")
    e("L_fb_loop:")
    e("    buffer_load_dwordx4 v[48:51], v1, s[16:19], s36 offen")
    e("    buffer_load_dwordx4 v[52:55], v1, s[16:19], s36 offen offset:256")
    e("    buffer_load_dwordx4 v[56:59], v1, s[16:19], s36 offen offset:512")
    e("    s_waitcnt vmcnt(0)")
    e("    v_mfma_f32_16x16x32_bf16 v[16:19], v[8:11], v[48:51], v[16:19]")
    e("    v_mfma_f32_16x16x32_bf16 v[16:19], v[12:15], v[52:55], v[16:19]")
    e("    v_mfma_f32_16x16x32_bf16 v[20:23], v[24:27], v[56:59], v[20:23]")
    e("    s_add_u32 s36, s36, 3072")
    e(f"    s_cmp_lt_u32 s36, {XBYTES}")
    e("    s_cbranch_scc1 L_fb_loop")
    e("    s_nop 7")
    acc_fold()
    e("    v_lshrrev_b32 v60, 1, v5")
    e("    v_lshlrev_b32 v60, 5, v60")
    e("    v_lshl_add_u32 v60, v4, 1, v60")
    e("    v_and_b32 v61, 1, v5")
    e("    v_add_lshl_u32 v60, v60, v61, 4")
    e(f"    ds_write_b128 v60, v[16:19] offset:{L_PART}")
    e("    v_mul_u32_u24 v63, 192, v5")
    e("    v_lshl_add_u32 v63, v4, 1, v63")
    gather_wd(range(6))
    e(f"    ds_read_b128 v[8:11], v3 offset:{L_PART}")
    e(f"    ds_read_b128 v[12:15], v3 offset:{L_PART + 768}")
    e("    s_waitcnt lgkmcnt(0)")
    e("    s_mov_b64 exec, 0xffff")
    e("    v_pk_add_f32 v[8:9], v[8:9], v[12:13]")
    e("    v_pk_add_f32 v[10:11], v[10:11], v[14:15]")
    e("    s_mov_b64 exec, -1")
    e("    s_branch L_mlp")
    e('.section .rodata,"a"')
    e(".p2align 6")
    e(f".amdhsa_kernel {NAME}_kernel")
    e("  .amdhsa_next_free_vgpr 256")
    e("  .amdhsa_next_free_sgpr 80")
    e("  .amdhsa_accum_offset 256")
    e("  .amdhsa_group_segment_fixed_size 0")
    e("  .amdhsa_kernarg_size 48")
    e("  .amdhsa_user_sgpr_count 2")
    e("  .amdhsa_user_sgpr_kernarg_segment_ptr 1")
    e("  .amdhsa_system_sgpr_workgroup_id_x 1")
    e("  .amdhsa_float_denorm_mode_32 3")
    e("  .amdhsa_float_denorm_mode_16_64 3")
    e(".end_amdhsa_kernel")
    return "\n".join(o) + "\n"


def parse_args(argv):
    out = None
    kw = {}
    for a in argv:
        if "=" in a:
            k, v = a.split("=", 1)
            try:
                v = int(v)
            except ValueError:
                v = v.replace("+", " ")
            kw[k] = v
        else:
            out = a
    return out, kw


if __name__ == "__main__":
    out, kw = parse_args(sys.argv[1:])
    txt = gen(**kw)
    if out:
        open(out, "w").write(txt)
    else:
        sys.stdout.write(txt)
```

```python
import sys
import math

NAME = "standalone__channel_attn_se__vision"
XBYTES = 512 * 512 * 192 * 2

DEFAULTS = dict(
    LDF="nt",
    STF="sc0 sc1",
    DIAG=0,
    FLAGBACK=14,
    SLEEP=0,
    POLLMAX=8192,
    FORCE_FALLBACK=0,
    NE=18,
    WE=4,
    WO=3,
    REPSH=3,
    R=4,
    DRY=1,
    PFC=1,
    TAILE=0,
    TAILO=0,
    TR=1,
)

L_PART = 0x0000
L_S = 0x2000
L_G = 0x2400
L_WD = 0x3000
L_WU = 0x5000
L_X = 0x7000

WS_ACC = 0
WS_F = 16384
WS_DIAG = 65536


def gen(**kw):
    P = dict(DEFAULTS)
    P.update(kw)
    o = []
    e = o.append
    R = P["R"]
    assert R in (1, 2, 4, 8)
    NE = P["NE"]
    NO = 32 - NE
    NX = NE - 16
    assert 0 <= NX <= NO
    LDS_BYTES = L_X + 8 * NX * 3072
    step = 2048 * 3072
    bstep = 1024 * 3072

    def stamp(k):
        if P["DIAG"]:
            e(f"    s_memrealtime s[{40+2*k}:{41+2*k}]")

    def build_A():
        e("    v_and_b32 v16, 1, v4")
        e("    v_cmp_eq_u32 vcc, 1, v16")
        e("    v_mov_b32 v17, 0x3f80")
        e("    v_mov_b32 v18, 0x3f800000")
        e("    v_cndmask_b32 v17, v17, v18, vcc")
        e("    v_lshrrev_b32 v16, 1, v4               ; j>>1")
        for q in range(8):
            e(f"    v_cmp_eq_u32 vcc, {q}, v16")
            e("    s_nop 1")
            e(f"    v_cndmask_b32 v{8+q}, 0, v17, vcc")
        for q in range(12):
            e(f"    v_mov_b32 v{16+q}, 0")
        e("    v_mov_b32 v28, 0x3e000000")

    def image_addr():
        e("    v_lshrrev_b32 v60, 1, v5")
        e("    v_lshlrev_b32 v60, 5, v60")
        e("    v_lshl_add_u32 v60, v4, 1, v60")
        e("    v_and_b32 v61, 1, v5")
        e("    v_add_u32 v60, v60, v61                ; slot = 32*(g4>>1) + 2j + (g4&1)")
        e("    v_mul_u32_u24 v61, 43, v60")
        e("    v_lshrrev_b32 v61, 7, v61              ; slot/3")
        e("    v_add_u32 v61, v60, v61")
        e("    v_lshlrev_b32 v63, 2, v60")
        e("    v_subrev_u32 v63, 189, v63")
        e("    v_cmp_gt_u32 vcc, 48, v60")
        e("    s_nop 1")
        e("    v_cndmask_b32 v60, v63, v61, vcc")
        e("    v_lshlrev_b32 v60, 4, v60")

    def mfma_for(d, m):
        if m == 0:
            e(f"    v_mfma_f32_16x16x32_bf16 v[16:19], v[8:11], v[{d}:{d+3}], v[16:19]")
        elif m == 1:
            e(f"    v_mfma_f32_16x16x32_bf16 v[16:19], v[12:15], v[{d}:{d+3}], v[16:19]")
            e(f"    v_mfma_f32_16x16x32_bf16 v[24:27], v[8:11], v[{d}:{d+3}], v[24:27]")
        else:
            e(f"    v_mfma_f32_16x16x32_bf16 v[24:27], v[12:15], v[{d}:{d+3}], v[24:27]")
            e(f"    v_mfma_f32_16x16x32_bf16 v[20:23], v[8:11], v[{d}:{d+3}], v[20:23]")

    def acc_fold():
        for r in range(4):
            e(f"    v_add_f32_dpp v{16+r}, v{24+r}, v{16+r} row_ror:8 row_mask:0xf bank_mask:0x3")
        e("    v_mov_b32_dpp v16, v28 quad_perm:[0,1,2,3] row_mask:0xc bank_mask:0xc")
        for r in range(4):
            e(f"    v_add_f32_dpp v{16+r}, v{20+r}, v{16+r} row_ror:8 row_mask:0x3 bank_mask:0xc")

    def gather_addr():
        if P["TR"]:
            e("    v_mul_u32_u24 v63, 192, v5")
            e("    v_lshrrev_b32 v59, 2, v4")
            e("    v_mad_u32_u24 v63, v59, 24, v63")
            e("    v_and_b32 v59, 3, v4")
            e("    v_lshl_add_u32 v63, v59, 3, v63")
        else:
            e("    v_mul_u32_u24 v63, 192, v5")
            e("    v_lshl_add_u32 v63, v4, 1, v63")

    def gather_wd(kks, tmp):
        if P["TR"]:
            for kk in kks:
                for h in range(2):
                    d = 24 + 4 * kk + 2 * h
                    e(f"    ds_read_b64_tr_b16 v[{d}:{d+1}], v63 offset:{L_WD + 768 * kk + 96 * h}")
            return
        for kk in kks:
            for q in range(4):
                off = L_WD + 768 * kk + 48 * q
                e(f"    ds_read_u16 v{tmp+2*q}, v63 offset:{off}")
                e(f"    ds_read_u16 v{tmp+1+2*q}, v63 offset:{off+24}")
            e("    s_waitcnt lgkmcnt(0)")
            for q in range(4):
                e(f"    v_lshl_or_b32 v{24+4*kk+q}, v{tmp+1+2*q}, 16, v{tmp+2*q}")

    e(f"; @launch grid=(256,1,1) block=(512,1,1) lds={LDS_BYTES}")
    e('.amdgcn_target "amdgcn-amd-amdhsa--gfx950"')
    e(".text")
    e(f".globl {NAME}_kernel")
    e(".p2align 8")
    e(f".type {NAME}_kernel,@function")
    e(f"{NAME}_kernel:")
    e("    s_load_dwordx8 s[4:11], s[0:1], 0")
    e("    s_load_dwordx4 s[12:15], s[0:1], 32")
    stamp(0)
    e("    s_cmp_ge_u32 s2, 256")
    e("    s_cbranch_scc1 L_end")
    e("    v_and_b32 v2, 63, v0                   ; lane")
    e("    v_lshrrev_b32 v3, 6, v0")
    e("    v_and_b32 v4, 15, v0                   ; j")
    e("    v_bfe_u32 v5, v0, 4, 2                 ; g4")
    e("    v_mul_u32_u24 v1, 768, v5")
    e("    v_lshl_add_u32 v1, v4, 4, v1           ; 768*g4 + 16*j")
    e("    v_readfirstlane_b32 s3, v3")
    e("    v_lshlrev_b32 v6, 4, v0")
    e("    v_mul_u32_u24 v7, 768, v3")
    e("    v_lshl_add_u32 v7, v2, 3, v7")
    e("    v_lshlrev_b32 v3, 4, v2                ; lane*16")
    e("    s_lshl_b32 s33, s2, 3")
    e("    s_add_u32 s33, s33, s3")
    e("    s_mul_i32 s33, s33, 3072")
    e("    s_lshr_b32 s37, s2, 1")
    e("    s_lshl_b32 s37, s37, 3")
    e("    s_add_u32 s37, s37, s3")
    e(f"    s_add_u32 s37, s37, {NO * 2048}")
    e("    s_mul_i32 s37, s37, 3072")
    e("    s_mov_b32 s18, %d" % XBYTES)
    e("    s_mov_b32 s19, 0x00020000")
    e("    s_mov_b32 s22, %d" % XBYTES)
    e("    s_mov_b32 s23, 0x00020000")
    e("    s_mov_b32 s26, 4608")
    e("    s_mov_b32 s27, 0x00020000")
    e("    s_mov_b32 s30, 4608")
    e("    s_mov_b32 s31, 0x00020000")
    e("    s_waitcnt lgkmcnt(0)")
    e("    s_mov_b32 s16, s4")
    e("    s_mov_b32 s17, s5")
    e("    s_mov_b32 s24, s6")
    e("    s_mov_b32 s25, s7")
    e("    s_mov_b32 s28, s8")
    e("    s_mov_b32 s29, s9")
    e("    s_mov_b32 s20, s10")
    e("    s_mov_b32 s21, s11")
    stamp(11)

    def setup_misc(tag):
        e("    buffer_load_dwordx4 v[48:51], v6, s[24:27], 0 offen")
        e("    buffer_load_dwordx2 v[52:53], v7, s[28:31], 0 offen")
        e("    buffer_load_dwordx2 v[54:55], v7, s[28:31], 0 offen offset:384")
        e(f"    s_add_u32 s4, s14, {WS_F}")
        e("    s_addc_u32 s5, s15, 0")
        e(f"    s_add_u32 s6, s14, {WS_F + 4096}")
        e("    s_addc_u32 s7, s15, 0")
        e("    v_mov_b32 v62, 0")
        if tag == "e":
            e("    s_or_b32 s34, s2, s3")
            e("    s_cmp_lg_u32 s34, 0")
            e("    s_cbranch_scc1 L_noinit")
            for q in range(4):
                e(f"    v_mov_b32 v{8+q}, 0")
            e("    v_lshrrev_b32 v12, 2, v2")
            e("    v_lshlrev_b32 v12, 7, v12")
            e("    v_and_b32 v13, 3, v2")
            e("    v_lshl_add_u32 v12, v13, 4, v12")
            for r in range(R):
                if r and r % 2 == 0:
                    e("    v_add_u32 v12, 4096, v12")
                e(f"    global_store_dwordx4 v12, v[8:11], s[14:15] offset:{WS_ACC + (r % 2) * 2048} sc1")
            for r in range(R):
                b = "s[4:5]" if r < 4 else "s[6:7]"
                e(f"    global_store_dwordx4 v3, v[8:11], {b} offset:{(r % 4) * 1024} sc1")
            e("    v_mov_b32 v13, 1")
            e("    s_waitcnt vmcnt(0)")
            e("    s_mov_b64 exec, 1")
            e("    global_store_dword v62, v13, s[12:13] sc1")
            e("    s_mov_b64 exec, -1")
            e("L_noinit:")
        build_A()
        image_addr()
        e("    s_lshl_b32 s34, s3, 10")
        e("    v_add_u32 v60, s34, v60")
        if NX:
            e(f"    s_mul_i32 s34, s3, {NX * 3072}")
            e(f"    s_add_u32 s34, s34, {L_X}")
            e("    v_add_u32 v0, s34, v3")

    def stage_weights():
        e("    s_mov_b32 s34, 0x05040100")
        e("    s_mov_b32 s35, 0x07060302")
        e(f"    ds_write_b128 v6, v[48:51] offset:{L_WD}")
        e("    v_perm_b32 v56, v54, v52, s34")
        e("    v_perm_b32 v57, v54, v52, s35")
        e("    v_perm_b32 v58, v55, v53, s34")
        e("    v_perm_b32 v59, v55, v53, s35")
        e(f"    ds_write_b128 v6, v[56:59] offset:{L_WU}")
        e("    v_add_u32 v61, 16, v4")
        e("    v_subrev_u32 v63, 24, v61")
        e("    v_min_u32 v61, v61, v63                ; (16+j) mod 24")
        e("    v_lshlrev_b32 v7, 5, v61")
        e(f"    v_add_u32 v7, {L_G}, v7")
        e("    v_lshlrev_b32 v6, 5, v4")
        e(f"    v_add_u32 v6, {L_G}, v6")

    def flag_load(tag):
        e("    s_cmp_lg_u32 s3, 0")
        e(f"    s_cbranch_scc1 L_noflagld{tag}")
        e("    global_load_dword v61, v62, s[12:13] sc1")
        e(f"L_noflagld{tag}:")

    def consume(i, park):
        t, m = divmod(i, 3)
        d = 64 + 12 * (t % 16) + 4 * m
        mfma_for(d, m)
        if t < park:
            e(f"    ds_write_b128 v0, v[{d}:{d+3}] offset:{3072 * t + 1024 * m}")

    def load_path(N, W, tag, tail):
        NL = 3 * N
        park = max(0, N - 16)
        Wf = float(W)
        W = min(int(math.ceil(Wf)), NL - 1, 40)
        frac = W - Wf if Wf < W else 0.0
        fpos = NL - P["FLAGBACK"] - tail
        assert fpos > W + 1

        def after_consume(k):
            if k == W:
                stage_weights()
            if k == fpos:
                flag_load(tag)

        nc = 0
        for i in range(NL):
            t, m = divmod(i, 3)
            if i == W:
                setup_misc(tag)
            if m == 0:
                if t == 0:
                    e("    s_mov_b32 s32, s33")
                elif t < NO:
                    e(f"    s_add_u32 s32, s32, {step}")
                elif t == NO:
                    e("    s_mov_b32 s32, s37")
                else:
                    e(f"    s_add_u32 s32, s32, {bstep}")
            if i >= W and i < NL - tail:
                k = i - W
                assert k == nc
                tight = 1 if int(frac * (i + 1)) != int(frac * i) else 0
                e(f"    s_waitcnt vmcnt({W - 1 - tight + (3 if k < W else 0)})")
                consume(k, park)
                after_consume(k)
                nc += 1
            if i >= 48 and park:
                assert nc > i - 48
                e("    s_waitcnt lgkmcnt(0)")
            d = 64 + 12 * (t % 16) + 4 * m
            e(f"    buffer_load_dwordx4 v[{d}:{d+3}], v1, s[16:19], s32 offen offset:{256*m} {P['LDF']}")
        stamp(1)
        for k in range(nc, NL):
            e(f"    s_waitcnt vmcnt({NL - 1 - k + (3 if k < W else 0)})")
            consume(k, park)
            after_consume(k)

    e("    s_bitcmp1_b32 s2, 0")
    e("    s_cbranch_scc1 L_acc_odd")
    load_path(NE, P["WE"], "e", P["TAILE"])
    e("    s_branch L_acc_done")
    e("L_acc_odd:")
    load_path(NO, P["WO"], "o", P["TAILO"])
    e("L_acc_done:")
    stamp(2)
    e("    s_nop 6")
    acc_fold()
    e(f"    ds_write_b128 v60, v[16:19] offset:{L_PART}")
    e("    s_waitcnt lgkmcnt(0)")
    e("    s_barrier                              ; B2")
    e("    s_mov_b64 s[72:73], -1")
    e("    s_cmp_lg_u32 s3, 0")
    e("    s_cbranch_scc1 L_others")
    stamp(3)
    e("    v_lshlrev_b32 v60, 2, v2               ; lane*4")
    for n in range(4):
        for wp in range(4):
            d = 8 + 8 * n + 2 * wp
            e(f"    ds_read2st64_b32 v[{d}:{d+1}], v60 offset0:{8*wp+n} offset1:{8*wp+4+n}")
    e(f"    s_lshr_b32 s34, s2, {P['REPSH']}")
    e(f"    s_and_b32 s34, s34, {R-1}              ; replica")
    e("    s_lshl_b32 s35, s34, 11")
    e("    v_lshlrev_b32 v48, 7, v5")
    e("    v_lshl_add_u32 v48, v4, 2, v48")
    e("    v_add_u32 v48, s35, v48")
    e("    s_lshl_b32 s35, s34, 10")
    e("    v_add_u32 v49, s35, v60")
    gather_addr()
    e(f"    s_mov_b32 s36, {P['POLLMAX']}")
    e("    s_mov_b32 s8, 0x1fff1fff")
    e("    s_mov_b32 s9, 0x1fff1fff")
    e("    s_mov_b32 s10, 0x0fff0fff")
    e("    s_mov_b32 s11, 0x0fff0fff")
    e(f"    v_mov_b32 v58, {float(256 // R - 1)}")
    e("L_flagcheck:")
    e("    s_waitcnt vmcnt(0)")
    e("    v_readfirstlane_b32 s35, v61")
    e("    s_cmp_lg_u32 s35, 0")
    e("    s_cbranch_scc1 L_flagok")
    e("    s_sub_u32 s36, s36, 1")
    e("    s_cbranch_scc1 L_fallback")
    e("    s_sleep 4")
    e("    global_load_dword v61, v62, s[12:13] sc1")
    e("    s_branch L_flagcheck")
    e("L_flagok:")
    stamp(4)
    e("    s_waitcnt lgkmcnt(0)")
    for n in range(4):
        b = 8 + 8 * n
        e(f"    v_pk_add_f32 v[{b}:{b+1}], v[{b}:{b+1}], v[{b+2}:{b+3}]")
        e(f"    v_pk_add_f32 v[{b+4}:{b+5}], v[{b+4}:{b+5}], v[{b+6}:{b+7}]")
    for n in range(4):
        b = 8 + 8 * n
        e(f"    v_pk_add_f32 v[{b}:{b+1}], v[{b}:{b+1}], v[{b+4}:{b+5}]")
    for n in range(4):
        b = 8 + 8 * n
        e(f"    v_add_f32 v{50+n}, v{b}, v{b+1}")
    e("    s_mov_b64 exec, s[8:9]")
    for n in range(4):
        e(f"    global_atomic_add_f32 v{54+n if n < 4 else 0}, v48, v{50+n}, s[14:15] offset:{WS_ACC + 512*n} sc0")
    e("    s_mov_b64 exec, -1")
    gather_wd(range(6), 8)
    e(f"    s_mov_b32 s36, {P['POLLMAX']}")
    e("    s_waitcnt vmcnt(0)")
    stamp(5)
    for n in range(4):
        e(f"    v_mov_b32_dpp v{8+n}, v{54+n} row_newbcast:12 row_mask:0xf bank_mask:0xf")
    for n in range(4):
        e(f"    v_add_f32 v{50+n}, v{50+n}, v{54+n}")
    for n in range(4):
        e(f"    v_cmp_eq_f32 s[{64+2*n}:{65+2*n}], v{8+n}, v58")
    for n in range(4):
        e(f"    v_or_b32 v{50+n}, 1, v{50+n}")
    for n in range(4):
        e(f"    s_and_b64 exec, s[{64+2*n}:{65+2*n}], s[10:11]")
        e(f"    s_cbranch_execz L_nopush{n}")
        e(f"    global_atomic_or v49, v{50+n}, s[4:5] offset:{256*n}")
        e(f"L_nopush{n}:")
    e("    s_mov_b64 exec, -1")
    if P["FORCE_FALLBACK"]:
        e("    s_branch L_fallback")
    e("    s_mov_b32 exec_lo, 0x77777777")
    e("    s_mov_b32 exec_hi, 0x77777777")
    rep_regs = [8, 12, 16, 20, 48, 52, 56, 60]
    e("L_poll:")
    for r in range(R):
        d = rep_regs[r]
        b = "s[4:5]" if r < 4 else "s[6:7]"
        e(f"    global_load_dwordx4 v[{d}:{d+3}], v3, {b} offset:{(r % 4) * 1024} sc1")
    e(f"    s_waitcnt vmcnt({R-1})")
    e("    v_and_b32 v2, v8, v9")
    e("    v_and_b32 v4, v10, v11")
    for r in range(1, R):
        e(f"    s_waitcnt vmcnt({R-1-r})")
        d = rep_regs[r]
        e(f"    v_bitop3_b32 v2, v2, v{d}, v{d+1} bitop3:0x80")
        e(f"    v_bitop3_b32 v4, v4, v{d+2}, v{d+3} bitop3:0x80")
        e(f"    v_pk_add_f32 v[8:9], v[8:9], v[{d}:{d+1}]")
        e(f"    v_pk_add_f32 v[10:11], v[10:11], v[{d+2}:{d+3}]")
    e("    v_bitop3_b32 v2, v2, v4, 1 bitop3:0x80")
    e("    v_cmp_ne_u32 vcc, 1, v2")
    e("    s_cbranch_vccz L_pollok")
    if P["SLEEP"]:
        e(f"    s_sleep {P['SLEEP']}")
    e("    s_sub_u32 s36, s36, 1")
    e("    s_cbranch_scc0 L_poll")
    e("    s_mov_b64 exec, -1")
    e("    s_branch L_fallback")
    e("L_pollok:")
    stamp(6)
    e("L_mlp:")
    stamp(7)
    e("    s_mov_b32 s34, 0x36800000              ; 2^-18")
    e("    s_mov_b32 s35, 0x36800000")
    e("    v_pk_mul_f32 v[8:9], v[8:9], s[34:35]")
    e("    v_pk_mul_f32 v[10:11], v[10:11], s[34:35]")
    e("    v_cvt_pk_bf16_f32 v8, v8, v9")
    e("    v_cvt_pk_bf16_f32 v9, v10, v11")
    e("    v_lshrrev_b32 v10, 1, v3               ; 8q")
    e("    v_lshrrev_b32 v11, 6, v3               ; q>>2")
    e("    v_lshlrev_b32 v11, 3, v11")
    e("    v_sub_u32 v10, v10, v11                ; 24*(q>>2) + 8*(q&3)")
    e(f"    ds_write_b64 v10, v[8:9] offset:{L_S}")
    e("    s_mov_b64 exec, s[72:73]")
    e("    v_lshlrev_b32 v10, 4, v5               ; 16*g4")
    sregs = [12, 16, 20, 48, 52, 56]
    for kk in range(6):
        d = sregs[kk]
        e(f"    ds_read_b128 v[{d}:{d+3}], v10 offset:{L_S + 64*kk}")
    for kk in range(6):
        d = sregs[kk]
        w = 24 + 4 * kk
        e(f"    s_waitcnt lgkmcnt({5-kk})" if not P["DIAG"] else "    s_waitcnt lgkmcnt(0)")
        c = "0" if kk == 0 else "v[8:11]"
        e(f"    v_mfma_f32_16x16x32_bf16 v[8:11], v[{d}:{d+3}], v[{w}:{w+3}], {c}")
    for p in range(6):
        e(f"    ds_read_b128 v[{24+4*p}:{27+4*p}], v3 offset:{L_WU + 1024*p}")
    e("    s_mov_b32 s34, 0xbfb8aa3b              ; -log2(e)")
    e("    s_mov_b32 s35, 0xbfb8aa3b")
    e("    s_nop 1")
    e("    v_cvt_pk_bf16_f32 v8, v8, v8")
    e("    v_lshlrev_b32 v8, 16, v8")
    e("    v_mul_f32 v9, s34, v8")
    e("    v_exp_f32 v9, v9")
    e("    s_nop 0")
    e("    v_add_f32 v9, 1.0, v9")
    e("    v_rcp_f32 v9, v9")
    e("    s_nop 0")
    e("    v_mul_f32 v8, v8, v9                   ; silu")
    e("    s_nop 1")
    e("    v_mov_b32_dpp v9, v8 quad_perm:[1,0,3,2] row_mask:0xf bank_mask:0xf")
    e("    v_cvt_pk_bf16_f32 v8, v8, v9           ; even lanes: {h[j], h[j+1]}")
    e("    s_nop 0")
    for p in range(6):
        e(f"    v_readlane_b32 s{64+p}, v8, {2*p}")
    e("    s_waitcnt lgkmcnt(0)")
    for p in range(6):
        for n in range(4):
            c = "0" if p == 0 else f"v{12+n}"
            e(f"    v_dot2_f32_bf16 v{12+n}, v{24+4*p+n}, s{64+p}, {c}")
    e("    s_nop 2")
    e("    v_cvt_pk_bf16_f32 v8, v12, v13")
    e("    v_cvt_pk_bf16_f32 v9, v14, v15")
    e("    v_lshlrev_b32 v12, 16, v8")
    e("    v_and_b32 v13, 0xffff0000, v8")
    e("    v_lshlrev_b32 v14, 16, v9")
    e("    v_and_b32 v15, 0xffff0000, v9")
    e("    v_pk_mul_f32 v[12:13], v[12:13], s[34:35]")
    e("    v_pk_mul_f32 v[14:15], v[14:15], s[34:35]")
    for n in range(4):
        e(f"    v_exp_f32 v{12+n}, v{12+n}")
    e("    s_nop 0")
    for n in range(4):
        e(f"    v_add_f32 v{12+n}, 1.0, v{12+n}")
    for n in range(4):
        e(f"    v_rcp_f32 v{12+n}, v{12+n}")
    e("    s_nop 0")
    e("    v_cvt_pk_bf16_f32 v8, v12, v13")
    e("    v_cvt_pk_bf16_f32 v9, v14, v15")
    e("    v_lshlrev_b32 v12, 16, v8")
    e("    v_and_b32 v13, 0xffff0000, v8")
    e("    v_lshlrev_b32 v14, 16, v9")
    e("    v_and_b32 v15, 0xffff0000, v9")
    e(f"    ds_write_b128 v3, v[12:15] offset:{L_G}")
    e("    s_waitcnt lgkmcnt(0)")
    stamp(8)
    e("    s_mov_b64 exec, -1")
    e("L_wait_g:")
    e("    s_waitcnt vmcnt(0)")
    e("    s_barrier                              ; B3")
    e("    ds_read_b128 v[24:27], v6")
    e("    ds_read_b128 v[28:31], v6 offset:16")
    e("    ds_read_b128 v[32:35], v7")
    e("    ds_read_b128 v[36:39], v7 offset:16")
    e("    ds_read_b128 v[40:43], v6 offset:256")
    e("    ds_read_b128 v[44:47], v6 offset:272")
    e("    s_mov_b32 s34, 0xffff0000")
    cnt = [0]

    def store_unit(slot):
        for m in range(3):
            d = 64 + 12 * slot + 4 * m
            g = 24 + 8 * m
            tb = 8 + 8 * (cnt[0] % 2)
            cnt[0] += 1
            for q in range(4):
                e(f"    v_lshlrev_b32 v{tb+2*q}, 16, v{d+q}")
                e(f"    v_and_b32 v{tb+2*q+1}, s34, v{d+q}")
            for q in range(4):
                e(f"    v_pk_mul_f32 v[{tb+2*q}:{tb+2*q+1}], v[{tb+2*q}:{tb+2*q+1}], v[{g+2*q}:{g+2*q+1}]")
            for q in range(4):
                e(f"    v_cvt_pk_bf16_f32 v{d+q}, v{tb+2*q}, v{tb+2*q+1}")
            e(f"    buffer_store_dwordx4 v[{d}:{d+3}], v1, s[20:23], s32 offen offset:{256*m} {P['STF']}")

    e("    s_waitcnt lgkmcnt(0)")
    if NE > NO:
        e("    s_bitcmp1_b32 s2, 0")
        e("    s_cbranch_scc1 L_st_common")
        e("    s_mov_b32 s32, s37")
        for t in range(NO, NE):
            store_unit(t % 16)
            e(f"    s_add_u32 s32, s32, {bstep}")
        e("    s_nop 1")
        for x in range(NX):
            for m in range(3):
                d = 64 + 12 * x + 4 * m
                e(f"    ds_read_b128 v[{d}:{d+3}], v0 offset:{3072 * x + 1024 * m}")
        e("L_st_common:")
    e(f"    s_add_u32 s32, s33, {NX * step}")
    for t in range(NX, NO):
        store_unit(t)
        e(f"    s_add_u32 s32, s32, {step}")
    e("    s_waitcnt lgkmcnt(0)")
    e("    s_mov_b32 s32, s33")
    for t in range(NX):
        store_unit(t)
        e(f"    s_add_u32 s32, s32, {step}")
    if P["DIAG"]:
        stamp(9)
        e("    s_waitcnt vmcnt(0)")
        stamp(10)
        e("    s_lshl_b32 s34, s2, 3")
        e("    s_add_u32 s34, s34, s3")
        e("    s_lshl_b32 s34, s34, 6")
        e(f"    s_add_u32 s34, s34, {WS_DIAG}")
        e("    v_mov_b32 v8, s34")
        e("    s_waitcnt lgkmcnt(0)")
        e("    s_mov_b64 exec, 1")
        for k in range(12):
            e(f"    v_mov_b32 v{12+k}, s{40+2*k}")
        e("    s_getreg_b32 s34, hwreg(HW_REG_XCC_ID)")
        e("    v_mov_b32 v24, s34")
        e("    v_mov_b32 v25, s36")
        e("    global_store_dwordx4 v8, v[12:15], s[14:15]")
        e("    global_store_dwordx4 v8, v[16:19], s[14:15] offset:16")
        e("    global_store_dwordx4 v8, v[20:23], s[14:15] offset:32")
        e("    global_store_dwordx2 v8, v[24:25], s[14:15] offset:48")
    e("L_end:")
    e("    s_endpgm")
    e("L_others:")
    if P["PFC"]:
        e("    s_getpc_b64 s[74:75]")
        e("L_pc:")
        e("    s_sub_u32 s74, s74, L_pc-L_wait_g")
        e("    s_subb_u32 s75, s75, 0")
        e("    v_lshlrev_b32 v8, 3, v3                ; lane*128")
        e("    v_min_u32 v8, L_end-L_wait_g, v8")
        e("    global_load_dword v63, v8, s[74:75]")
    if P["DRY"]:
        e("    s_mov_b64 s[72:73], 0")
        e("    s_mov_b64 exec, 0")
        e("    s_branch L_mlp")
    else:
        e("    s_branch L_wait_g")
    e("L_fallback:")
    e("    s_waitcnt vmcnt(0) lgkmcnt(0)")
    e("    v_bfe_u32 v4, v3, 4, 4                 ; j again")
    build_A()
    image_addr()
    e("    s_mov_b32 s36, 0")
    e("L_fb_loop:")
    for m in range(3):
        e(f"    buffer_load_dwordx4 v[{48+4*m}:{51+4*m}], v1, s[16:19], s36 offen offset:{256*m}")
    e("    s_waitcnt vmcnt(0)")
    for m in range(3):
        mfma_for(48 + 4 * m, m)
    e("    s_add_u32 s36, s36, 3072")
    e(f"    s_cmp_lt_u32 s36, {XBYTES}")
    e("    s_cbranch_scc1 L_fb_loop")
    e("    s_nop 7")
    acc_fold()
    e(f"    ds_write_b128 v60, v[16:19] offset:{L_PART}")
    gather_addr()
    gather_wd(range(6), 8)
    e(f"    ds_read_b128 v[8:11], v3 offset:{L_PART}")
    e("    s_waitcnt lgkmcnt(0)")
    e("    s_mov_b32 exec_lo, 0x77777777")
    e("    s_mov_b32 exec_hi, 0x77777777")
    e("    s_branch L_mlp")
    e('.section .rodata,"a"')
    e(".p2align 6")
    e(f".amdhsa_kernel {NAME}_kernel")
    e("  .amdhsa_next_free_vgpr 256")
    e("  .amdhsa_next_free_sgpr 80")
    e("  .amdhsa_accum_offset 256")
    e("  .amdhsa_group_segment_fixed_size 0")
    e("  .amdhsa_kernarg_size 48")
    e("  .amdhsa_user_sgpr_count 2")
    e("  .amdhsa_user_sgpr_kernarg_segment_ptr 1")
    e("  .amdhsa_system_sgpr_workgroup_id_x 1")
    e("  .amdhsa_float_denorm_mode_32 3")
    e("  .amdhsa_float_denorm_mode_16_64 3")
    e(".end_amdhsa_kernel")
    return "\n".join(o) + "\n"


def parse_args(argv):
    out = None
    kw = {}
    for a in argv:
        if "=" in a:
            k, v = a.split("=", 1)
            try:
                v = int(v)
            except ValueError:
                v = v.replace("+", " ")
            kw[k] = v
        else:
            out = a
    return out, kw


if __name__ == "__main__":
    out, kw = parse_args(sys.argv[1:])
    txt = gen(**kw)
    if out:
        open(out, "w").write(txt)
    else:
        sys.stdout.write(txt)
```

```python
import sys
import math

NAME = "standalone__channel_attn_se__vision"
XBYTES = 512 * 512 * 192 * 2

DEFAULTS = dict(
    LDF="nt",
    STF="sc0 sc1",
    DIAG=0,
    FLAGBACK=14,
    SLEEP=0,
    POLLMAX=8192,
    FORCE_FALLBACK=0,
    NE=18,
    WE=4,
    WO=3,
    REPSH=3,
    R=4,
    REPL=0,
    REPS=0,
    PRE=0,
    DRY=1,
    PFC=1,
    TAILE=0,
    TAILO=0,
    TR=1,
)

L_PART = 0x0000
L_S = 0x2000
L_G = 0x2400
L_WD = 0x3000
L_WU = 0x5000
L_X = 0x7000

WS_ACC = 0
WS_F = 16384
WS_DIAG = 65536


def gen(**kw):
    P = dict(DEFAULTS)
    P.update(kw)
    o = []
    e = o.append
    R = P["R"]
    assert R in (1, 2, 4, 8)
    NE = P["NE"]
    NO = 32 - NE
    NX = NE - 16
    assert 0 <= NX <= NO
    LDS_BYTES = L_X + 8 * NX * 3072
    step = 2048 * 3072
    bstep = 1024 * 3072

    def stamp(k):
        if P["DIAG"]:
            e(f"    s_memrealtime s[{40+2*k}:{41+2*k}]")

    def build_A():
        e("    v_and_b32 v16, 1, v4")
        e("    v_cmp_eq_u32 vcc, 1, v16")
        e("    v_mov_b32 v17, 0x3f80")
        e("    v_mov_b32 v18, 0x3f800000")
        e("    v_cndmask_b32 v17, v17, v18, vcc")
        e("    v_lshrrev_b32 v16, 1, v4               ; j>>1")
        for q in range(8):
            e(f"    v_cmp_eq_u32 vcc, {q}, v16")
            e("    s_nop 1")
            e(f"    v_cndmask_b32 v{8+q}, 0, v17, vcc")
        for q in range(12):
            e(f"    v_mov_b32 v{16+q}, 0")
        e("    v_mov_b32 v28, 0x3e000000")

    def image_addr():
        e("    v_lshrrev_b32 v60, 1, v5")
        e("    v_lshlrev_b32 v60, 5, v60")
        e("    v_lshl_add_u32 v60, v4, 1, v60")
        e("    v_and_b32 v61, 1, v5")
        e("    v_add_u32 v60, v60, v61                ; slot = 32*(g4>>1) + 2j + (g4&1)")
        e("    v_mul_u32_u24 v61, 43, v60")
        e("    v_lshrrev_b32 v61, 7, v61              ; slot/3")
        e("    v_add_u32 v61, v60, v61")
        e("    v_lshlrev_b32 v63, 2, v60")
        e("    v_subrev_u32 v63, 189, v63")
        e("    v_cmp_gt_u32 vcc, 48, v60")
        e("    s_nop 1")
        e("    v_cndmask_b32 v60, v63, v61, vcc")
        e("    v_lshlrev_b32 v60, 4, v60")

    def mfma_for(d, m):
        if m == 0:
            e(f"    v_mfma_f32_16x16x32_bf16 v[16:19], v[8:11], v[{d}:{d+3}], v[16:19]")
        elif m == 1:
            e(f"    v_mfma_f32_16x16x32_bf16 v[16:19], v[12:15], v[{d}:{d+3}], v[16:19]")
            e(f"    v_mfma_f32_16x16x32_bf16 v[24:27], v[8:11], v[{d}:{d+3}], v[24:27]")
        else:
            e(f"    v_mfma_f32_16x16x32_bf16 v[24:27], v[12:15], v[{d}:{d+3}], v[24:27]")
            e(f"    v_mfma_f32_16x16x32_bf16 v[20:23], v[8:11], v[{d}:{d+3}], v[20:23]")

    def acc_fold():
        for r in range(4):
            e(f"    v_add_f32_dpp v{16+r}, v{24+r}, v{16+r} row_ror:8 row_mask:0xf bank_mask:0x3")
        e("    v_mov_b32_dpp v16, v28 quad_perm:[0,1,2,3] row_mask:0xc bank_mask:0xc")
        for r in range(4):
            e(f"    v_add_f32_dpp v{16+r}, v{20+r}, v{16+r} row_ror:8 row_mask:0x3 bank_mask:0xc")

    def gather_addr():
        if P["TR"]:
            e("    v_mul_u32_u24 v63, 192, v5")
            e("    v_lshrrev_b32 v59, 2, v4")
            e("    v_mad_u32_u24 v63, v59, 24, v63")
            e("    v_and_b32 v59, 3, v4")
            e("    v_lshl_add_u32 v63, v59, 3, v63")
        else:
            e("    v_mul_u32_u24 v63, 192, v5")
            e("    v_lshl_add_u32 v63, v4, 1, v63")

    def gather_wd(kks, tmp):
        if P["TR"]:
            for kk in kks:
                for h in range(2):
                    d = 24 + 4 * kk + 2 * h
                    e(f"    ds_read_b64_tr_b16 v[{d}:{d+1}], v63 offset:{L_WD + 768 * kk + 96 * h}")
            return
        for kk in kks:
            for q in range(4):
                off = L_WD + 768 * kk + 48 * q
                e(f"    ds_read_u16 v{tmp+2*q}, v63 offset:{off}")
                e(f"    ds_read_u16 v{tmp+1+2*q}, v63 offset:{off+24}")
            e("    s_waitcnt lgkmcnt(0)")
            for q in range(4):
                e(f"    v_lshl_or_b32 v{24+4*kk+q}, v{tmp+1+2*q}, 16, v{tmp+2*q}")

    e(f"; @launch grid=(256,1,1) block=(512,1,1) lds={LDS_BYTES}")
    e('.amdgcn_target "amdgcn-amd-amdhsa--gfx950"')
    e(".text")
    e(f".globl {NAME}_kernel")
    e(".p2align 8")
    e(f".type {NAME}_kernel,@function")
    e(f"{NAME}_kernel:")
    e("    s_load_dwordx8 s[4:11], s[0:1], 0")
    e("    s_load_dwordx4 s[12:15], s[0:1], 32")
    stamp(0)
    e("    s_cmp_ge_u32 s2, 256")
    e("    s_cbranch_scc1 L_end")
    e("    v_and_b32 v2, 63, v0                   ; lane")
    e("    v_lshrrev_b32 v3, 6, v0")
    e("    v_and_b32 v4, 15, v0                   ; j")
    e("    v_bfe_u32 v5, v0, 4, 2                 ; g4")
    e("    v_mul_u32_u24 v1, 768, v5")
    e("    v_lshl_add_u32 v1, v4, 4, v1           ; 768*g4 + 16*j")
    e("    v_readfirstlane_b32 s3, v3")
    e("    v_lshlrev_b32 v6, 4, v0")
    e("    v_mul_u32_u24 v7, 768, v3")
    e("    v_lshl_add_u32 v7, v2, 3, v7")
    e("    v_lshlrev_b32 v3, 4, v2                ; lane*16")
    e("    s_lshl_b32 s33, s2, 3")
    e("    s_add_u32 s33, s33, s3")
    e("    s_mul_i32 s33, s33, 3072")
    e("    s_lshr_b32 s37, s2, 1")
    e("    s_lshl_b32 s37, s37, 3")
    e("    s_add_u32 s37, s37, s3")
    e(f"    s_add_u32 s37, s37, {NO * 2048}")
    e("    s_mul_i32 s37, s37, 3072")
    e("    s_mov_b32 s18, %d" % XBYTES)
    e("    s_mov_b32 s19, 0x00020000")
    e("    s_mov_b32 s22, %d" % XBYTES)
    e("    s_mov_b32 s23, 0x00020000")
    e("    s_mov_b32 s26, 4608")
    e("    s_mov_b32 s27, 0x00020000")
    e("    s_mov_b32 s30, 4608")
    e("    s_mov_b32 s31, 0x00020000")
    e("    s_waitcnt lgkmcnt(0)")
    e("    s_mov_b32 s16, s4")
    e("    s_mov_b32 s17, s5")
    e("    s_mov_b32 s24, s6")
    e("    s_mov_b32 s25, s7")
    e("    s_mov_b32 s28, s8")
    e("    s_mov_b32 s29, s9")
    e("    s_mov_b32 s20, s10")
    e("    s_mov_b32 s21, s11")
    stamp(11)
    if P["PRE"]:
        e("    s_cmp_lg_u32 s3, 7")
        e("    s_cbranch_scc1 L_nopre")
        e("    v_lshlrev_b32 v56, 21, v2")
        if P["PRE"] & 1:
            e("    buffer_load_dword v57, v56, s[16:19], 0 offen nt")
        if P["PRE"] & 2:
            e("    buffer_load_dword v58, v56, s[20:23], 0 offen nt")
        e("L_nopre:")

    def setup_misc(tag):
        e("    buffer_load_dwordx4 v[48:51], v6, s[24:27], 0 offen")
        e("    buffer_load_dwordx2 v[52:53], v7, s[28:31], 0 offen")
        e("    buffer_load_dwordx2 v[54:55], v7, s[28:31], 0 offen offset:384")
        e(f"    s_add_u32 s4, s14, {WS_F}")
        e("    s_addc_u32 s5, s15, 0")
        e(f"    s_add_u32 s6, s14, {WS_F + 4096}")
        e("    s_addc_u32 s7, s15, 0")
        e("    v_mov_b32 v62, 0")
        if tag == "e":
            e("    s_or_b32 s34, s2, s3")
            e("    s_cmp_lg_u32 s34, 0")
            e("    s_cbranch_scc1 L_noinit")
            for q in range(4):
                e(f"    v_mov_b32 v{8+q}, 0")
            e("    v_lshrrev_b32 v12, 2, v2")
            e("    v_lshlrev_b32 v12, 7, v12")
            e("    v_and_b32 v13, 3, v2")
            e("    v_lshl_add_u32 v12, v13, 4, v12")
            for r in range(R):
                if r and r % 2 == 0:
                    e("    v_add_u32 v12, 4096, v12")
                e(f"    global_store_dwordx4 v12, v[8:11], s[14:15] offset:{WS_ACC + (r % 2) * 2048} sc1")
            for r in range(R):
                b = "s[4:5]" if r < 4 else "s[6:7]"
                e(f"    global_store_dwordx4 v3, v[8:11], {b} offset:{(r % 4) * 1024} sc1")
            e("    v_mov_b32 v13, 1")
            e("    s_waitcnt vmcnt(0)")
            e("    s_mov_b64 exec, 1")
            e("    global_store_dword v62, v13, s[12:13] sc1")
            e("    s_mov_b64 exec, -1")
            e("L_noinit:")
        build_A()
        image_addr()
        e("    s_lshl_b32 s34, s3, 10")
        e("    v_add_u32 v60, s34, v60")
        if NX:
            e(f"    s_mul_i32 s34, s3, {NX * 3072}")
            e(f"    s_add_u32 s34, s34, {L_X}")
            e("    v_add_u32 v0, s34, v3")

    def stage_weights():
        e("    s_mov_b32 s34, 0x05040100")
        e("    s_mov_b32 s35, 0x07060302")
        e(f"    ds_write_b128 v6, v[48:51] offset:{L_WD}")
        e("    v_perm_b32 v56, v54, v52, s34")
        e("    v_perm_b32 v57, v54, v52, s35")
        e("    v_perm_b32 v58, v55, v53, s34")
        e("    v_perm_b32 v59, v55, v53, s35")
        e(f"    ds_write_b128 v6, v[56:59] offset:{L_WU}")
        e("    v_add_u32 v61, 16, v4")
        e("    v_subrev_u32 v63, 24, v61")
        e("    v_min_u32 v61, v61, v63                ; (16+j) mod 24")
        e("    v_lshlrev_b32 v7, 5, v61")
        e(f"    v_add_u32 v7, {L_G}, v7")
        e("    v_lshlrev_b32 v6, 5, v4")
        e(f"    v_add_u32 v6, {L_G}, v6")

    def flag_load(tag):
        e("    s_cmp_lg_u32 s3, 0")
        e(f"    s_cbranch_scc1 L_noflagld{tag}")
        e("    global_load_dword v61, v62, s[12:13] sc1")
        e(f"L_noflagld{tag}:")

    def consume(i, park):
        t, m = divmod(i, 3)
        d = 64 + 12 * (t % 16) + 4 * m
        mfma_for(d, m)
        if t < park:
            e(f"    ds_write_b128 v0, v[{d}:{d+3}] offset:{3072 * t + 1024 * m}")

    def load_path(N, W, tag, tail):
        NL = 3 * N
        park = max(0, N - 16)
        Wf = float(W)
        W = min(int(math.ceil(Wf)), NL - 1, 40)
        frac = W - Wf if Wf < W else 0.0
        fpos = NL - P["FLAGBACK"] - tail
        assert fpos > W + 1

        def after_consume(k):
            if k == W:
                stage_weights()
            if k == fpos:
                flag_load(tag)

        nc = 0
        for i in range(NL):
            t, m = divmod(i, 3)
            if i == W:
                setup_misc(tag)
            if m == 0:
                if t == 0:
                    e("    s_mov_b32 s32, s33")
                elif t < NO:
                    e(f"    s_add_u32 s32, s32, {step}")
                elif t == NO:
                    e("    s_mov_b32 s32, s37")
                else:
                    e(f"    s_add_u32 s32, s32, {bstep}")
            if i >= W and i < NL - tail:
                k = i - W
                assert k == nc
                tight = 1 if int(frac * (i + 1)) != int(frac * i) else 0
                e(f"    s_waitcnt vmcnt({W - 1 - tight + (3 if k < W else 0)})")
                consume(k, park)
                after_consume(k)
                nc += 1
            if i >= 48 and park:
                assert nc > i - 48
                e("    s_waitcnt lgkmcnt(0)")
            d = 64 + 12 * (t % 16) + 4 * m
            e(f"    buffer_load_dwordx4 v[{d}:{d+3}], v1, s[16:19], s32 offen offset:{256*m} {P['LDF']}")
        stamp(1)
        for k in range(nc, NL):
            e(f"    s_waitcnt vmcnt({NL - 1 - k + (3 if k < W else 0)})")
            consume(k, park)
            after_consume(k)

    e("    s_bitcmp1_b32 s2, 0")
    e("    s_cbranch_scc1 L_acc_odd")
    load_path(NE, P["WE"], "e", P["TAILE"])
    e("    s_branch L_acc_done")
    e("L_acc_odd:")
    load_path(NO, P["WO"], "o", P["TAILO"])
    e("L_acc_done:")
    if P["REPL"]:
        assert NE == 16
        for i in range(48):
            t, m = divmod(i, 3)
            if m == 0:
                e("    s_mov_b32 s32, s33" if t == 0 else f"    s_add_u32 s32, s32, {step}")
            e(f"    s_waitcnt vmcnt({P['REPL'] - 1})")
            d = 64 + 4 * i
            e(f"    buffer_load_dwordx4 v[{d}:{d+3}], v1, s[16:19], s32 offen offset:{256*m} {P['LDF']}")
        e("    s_waitcnt vmcnt(0)")
    stamp(2)
    e("    s_nop 6")
    acc_fold()
    e(f"    ds_write_b128 v60, v[16:19] offset:{L_PART}")
    e("    s_waitcnt lgkmcnt(0)")
    e("    s_barrier                              ; B2")
    e("    s_mov_b64 s[72:73], -1")
    e("    s_cmp_lg_u32 s3, 0")
    e("    s_cbranch_scc1 L_others")
    stamp(3)
    e("    v_lshlrev_b32 v60, 2, v2               ; lane*4")
    for n in range(4):
        for wp in range(4):
            d = 8 + 8 * n + 2 * wp
            e(f"    ds_read2st64_b32 v[{d}:{d+1}], v60 offset0:{8*wp+n} offset1:{8*wp+4+n}")
    e(f"    s_lshr_b32 s34, s2, {P['REPSH']}")
    e(f"    s_and_b32 s34, s34, {R-1}              ; replica")
    e("    s_lshl_b32 s35, s34, 11")
    e("    v_lshlrev_b32 v48, 7, v5")
    e("    v_lshl_add_u32 v48, v4, 2, v48")
    e("    v_add_u32 v48, s35, v48")
    e("    s_lshl_b32 s35, s34, 10")
    e("    v_add_u32 v49, s35, v60")
    gather_addr()
    e(f"    s_mov_b32 s36, {P['POLLMAX']}")
    e("    s_mov_b32 s8, 0x1fff1fff")
    e("    s_mov_b32 s9, 0x1fff1fff")
    e("    s_mov_b32 s10, 0x0fff0fff")
    e("    s_mov_b32 s11, 0x0fff0fff")
    e(f"    v_mov_b32 v58, {float(256 // R - 1)}")
    e("L_flagcheck:")
    e("    s_waitcnt vmcnt(0)")
    e("    v_readfirstlane_b32 s35, v61")
    e("    s_cmp_lg_u32 s35, 0")
    e("    s_cbranch_scc1 L_flagok")
    e("    s_sub_u32 s36, s36, 1")
    e("    s_cbranch_scc1 L_fallback")
    e("    s_sleep 4")
    e("    global_load_dword v61, v62, s[12:13] sc1")
    e("    s_branch L_flagcheck")
    e("L_flagok:")
    stamp(4)
    e("    s_waitcnt lgkmcnt(0)")
    for n in range(4):
        b = 8 + 8 * n
        e(f"    v_pk_add_f32 v[{b}:{b+1}], v[{b}:{b+1}], v[{b+2}:{b+3}]")
        e(f"    v_pk_add_f32 v[{b+4}:{b+5}], v[{b+4}:{b+5}], v[{b+6}:{b+7}]")
    for n in range(4):
        b = 8 + 8 * n
        e(f"    v_pk_add_f32 v[{b}:{b+1}], v[{b}:{b+1}], v[{b+4}:{b+5}]")
    for n in range(4):
        b = 8 + 8 * n
        e(f"    v_add_f32 v{50+n}, v{b}, v{b+1}")
    e("    s_mov_b64 exec, s[8:9]")
    for n in range(4):
        e(f"    global_atomic_add_f32 v{54+n if n < 4 else 0}, v48, v{50+n}, s[14:15] offset:{WS_ACC + 512*n} sc0")
    e("    s_mov_b64 exec, -1")
    gather_wd(range(6), 8)
    e(f"    s_mov_b32 s36, {P['POLLMAX']}")
    e("    s_waitcnt vmcnt(0)")
    stamp(5)
    for n in range(4):
        e(f"    v_mov_b32_dpp v{8+n}, v{54+n} row_newbcast:12 row_mask:0xf bank_mask:0xf")
    for n in range(4):
        e(f"    v_add_f32 v{50+n}, v{50+n}, v{54+n}")
    for n in range(4):
        e(f"    v_cmp_eq_f32 s[{64+2*n}:{65+2*n}], v{8+n}, v58")
    for n in range(4):
        e(f"    v_or_b32 v{50+n}, 1, v{50+n}")
    for n in range(4):
        e(f"    s_and_b64 exec, s[{64+2*n}:{65+2*n}], s[10:11]")
        e(f"    s_cbranch_execz L_nopush{n}")
        e(f"    global_atomic_or v49, v{50+n}, s[4:5] offset:{256*n}")
        e(f"L_nopush{n}:")
    e("    s_mov_b64 exec, -1")
    if P["FORCE_FALLBACK"]:
        e("    s_branch L_fallback")
    e("    s_mov_b32 exec_lo, 0x77777777")
    e("    s_mov_b32 exec_hi, 0x77777777")
    rep_regs = [8, 12, 16, 20, 48, 52, 56, 60]
    e("L_poll:")
    for r in range(R):
        d = rep_regs[r]
        b = "s[4:5]" if r < 4 else "s[6:7]"
        e(f"    global_load_dwordx4 v[{d}:{d+3}], v3, {b} offset:{(r % 4) * 1024} sc1")
    e(f"    s_waitcnt vmcnt({R-1})")
    e("    v_and_b32 v2, v8, v9")
    e("    v_and_b32 v4, v10, v11")
    for r in range(1, R):
        e(f"    s_waitcnt vmcnt({R-1-r})")
        d = rep_regs[r]
        e(f"    v_bitop3_b32 v2, v2, v{d}, v{d+1} bitop3:0x80")
        e(f"    v_bitop3_b32 v4, v4, v{d+2}, v{d+3} bitop3:0x80")
        e(f"    v_pk_add_f32 v[8:9], v[8:9], v[{d}:{d+1}]")
        e(f"    v_pk_add_f32 v[10:11], v[10:11], v[{d+2}:{d+3}]")
    e("    v_bitop3_b32 v2, v2, v4, 1 bitop3:0x80")
    e("    v_cmp_ne_u32 vcc, 1, v2")
    e("    s_cbranch_vccz L_pollok")
    if P["SLEEP"]:
        e(f"    s_sleep {P['SLEEP']}")
    e("    s_sub_u32 s36, s36, 1")
    e("    s_cbranch_scc0 L_poll")
    e("    s_mov_b64 exec, -1")
    e("    s_branch L_fallback")
    e("L_pollok:")
    stamp(6)
    e("L_mlp:")
    stamp(7)
    e("    s_mov_b32 s34, 0x36800000              ; 2^-18")
    e("    s_mov_b32 s35, 0x36800000")
    e("    v_pk_mul_f32 v[8:9], v[8:9], s[34:35]")
    e("    v_pk_mul_f32 v[10:11], v[10:11], s[34:35]")
    e("    v_cvt_pk_bf16_f32 v8, v8, v9")
    e("    v_cvt_pk_bf16_f32 v9, v10, v11")
    e("    v_lshrrev_b32 v10, 1, v3               ; 8q")
    e("    v_lshrrev_b32 v11, 6, v3               ; q>>2")
    e("    v_lshlrev_b32 v11, 3, v11")
    e("    v_sub_u32 v10, v10, v11                ; 24*(q>>2) + 8*(q&3)")
    e(f"    ds_write_b64 v10, v[8:9] offset:{L_S}")
    e("    s_mov_b64 exec, s[72:73]")
    e("    v_lshlrev_b32 v10, 4, v5               ; 16*g4")
    sregs = [12, 16, 20, 48, 52, 56]
    for kk in range(6):
        d = sregs[kk]
        e(f"    ds_read_b128 v[{d}:{d+3}], v10 offset:{L_S + 64*kk}")
    for kk in range(6):
        d = sregs[kk]
        w = 24 + 4 * kk
        e(f"    s_waitcnt lgkmcnt({5-kk})" if not P["DIAG"] else "    s_waitcnt lgkmcnt(0)")
        c = "0" if kk == 0 else "v[8:11]"
        e(f"    v_mfma_f32_16x16x32_bf16 v[8:11], v[{d}:{d+3}], v[{w}:{w+3}], {c}")
    for p in range(6):
        e(f"    ds_read_b128 v[{24+4*p}:{27+4*p}], v3 offset:{L_WU + 1024*p}")
    e("    s_mov_b32 s34, 0xbfb8aa3b              ; -log2(e)")
    e("    s_mov_b32 s35, 0xbfb8aa3b")
    e("    s_nop 1")
    e("    v_cvt_pk_bf16_f32 v8, v8, v8")
    e("    v_lshlrev_b32 v8, 16, v8")
    e("    v_mul_f32 v9, s34, v8")
    e("    v_exp_f32 v9, v9")
    e("    s_nop 0")
    e("    v_add_f32 v9, 1.0, v9")
    e("    v_rcp_f32 v9, v9")
    e("    s_nop 0")
    e("    v_mul_f32 v8, v8, v9                   ; silu")
    e("    s_nop 1")
    e("    v_mov_b32_dpp v9, v8 quad_perm:[1,0,3,2] row_mask:0xf bank_mask:0xf")
    e("    v_cvt_pk_bf16_f32 v8, v8, v9           ; even lanes: {h[j], h[j+1]}")
    e("    s_nop 0")
    for p in range(6):
        e(f"    v_readlane_b32 s{64+p}, v8, {2*p}")
    e("    s_waitcnt lgkmcnt(0)")
    for p in range(6):
        for n in range(4):
            c = "0" if p == 0 else f"v{12+n}"
            e(f"    v_dot2_f32_bf16 v{12+n}, v{24+4*p+n}, s{64+p}, {c}")
    e("    s_nop 2")
    e("    v_cvt_pk_bf16_f32 v8, v12, v13")
    e("    v_cvt_pk_bf16_f32 v9, v14, v15")
    e("    v_lshlrev_b32 v12, 16, v8")
    e("    v_and_b32 v13, 0xffff0000, v8")
    e("    v_lshlrev_b32 v14, 16, v9")
    e("    v_and_b32 v15, 0xffff0000, v9")
    e("    v_pk_mul_f32 v[12:13], v[12:13], s[34:35]")
    e("    v_pk_mul_f32 v[14:15], v[14:15], s[34:35]")
    for n in range(4):
        e(f"    v_exp_f32 v{12+n}, v{12+n}")
    e("    s_nop 0")
    for n in range(4):
        e(f"    v_add_f32 v{12+n}, 1.0, v{12+n}")
    for n in range(4):
        e(f"    v_rcp_f32 v{12+n}, v{12+n}")
    e("    s_nop 0")
    e("    v_cvt_pk_bf16_f32 v8, v12, v13")
    e("    v_cvt_pk_bf16_f32 v9, v14, v15")
    e("    v_lshlrev_b32 v12, 16, v8")
    e("    v_and_b32 v13, 0xffff0000, v8")
    e("    v_lshlrev_b32 v14, 16, v9")
    e("    v_and_b32 v15, 0xffff0000, v9")
    e(f"    ds_write_b128 v3, v[12:15] offset:{L_G}")
    e("    s_waitcnt lgkmcnt(0)")
    stamp(8)
    e("    s_mov_b64 exec, -1")
    e("L_wait_g:")
    e("    s_waitcnt vmcnt(0)")
    e("    s_barrier                              ; B3")
    e("    ds_read_b128 v[24:27], v6")
    e("    ds_read_b128 v[28:31], v6 offset:16")
    e("    ds_read_b128 v[32:35], v7")
    e("    ds_read_b128 v[36:39], v7 offset:16")
    e("    ds_read_b128 v[40:43], v6 offset:256")
    e("    ds_read_b128 v[44:47], v6 offset:272")
    e("    s_mov_b32 s34, 0xffff0000")
    cnt = [0]

    def store_unit(slot):
        for m in range(3):
            d = 64 + 12 * slot + 4 * m
            g = 24 + 8 * m
            tb = 8 + 8 * (cnt[0] % 2)
            cnt[0] += 1
            for q in range(4):
                e(f"    v_lshlrev_b32 v{tb+2*q}, 16, v{d+q}")
                e(f"    v_and_b32 v{tb+2*q+1}, s34, v{d+q}")
            for q in range(4):
                e(f"    v_pk_mul_f32 v[{tb+2*q}:{tb+2*q+1}], v[{tb+2*q}:{tb+2*q+1}], v[{g+2*q}:{g+2*q+1}]")
            for q in range(4):
                e(f"    v_cvt_pk_bf16_f32 v{d+q}, v{tb+2*q}, v{tb+2*q+1}")
            e(f"    buffer_store_dwordx4 v[{d}:{d+3}], v1, s[20:23], s32 offen offset:{256*m} {P['STF']}")

    e("    s_waitcnt lgkmcnt(0)")
    if NE > NO:
        e("    s_bitcmp1_b32 s2, 0")
        e("    s_cbranch_scc1 L_st_common")
        e("    s_mov_b32 s32, s37")
        for t in range(NO, NE):
            store_unit(t % 16)
            e(f"    s_add_u32 s32, s32, {bstep}")
        e("    s_nop 1")
        for x in range(NX):
            for m in range(3):
                d = 64 + 12 * x + 4 * m
                e(f"    ds_read_b128 v[{d}:{d+3}], v0 offset:{3072 * x + 1024 * m}")
        e("L_st_common:")
    e(f"    s_add_u32 s32, s33, {NX * step}")
    for t in range(NX, NO):
        store_unit(t)
        e(f"    s_add_u32 s32, s32, {step}")
    e("    s_waitcnt lgkmcnt(0)")
    e("    s_mov_b32 s32, s33")
    for t in range(NX):
        store_unit(t)
        e(f"    s_add_u32 s32, s32, {step}")
    if P["REPS"]:
        assert NE == 16
        for i in range(48):
            t, m = divmod(i, 3)
            if m == 0:
                e("    s_mov_b32 s32, s33" if t == 0 else f"    s_add_u32 s32, s32, {step}")
            d = 64 + 4 * i
            e(f"    buffer_store_dwordx4 v[{d}:{d+3}], v1, s[20:23], s32 offen offset:{256*m} {P['STF']}")
    if P["DIAG"]:
        stamp(9)
        e("    s_waitcnt vmcnt(0)")
        stamp(10)
        e("    s_lshl_b32 s34, s2, 3")
        e("    s_add_u32 s34, s34, s3")
        e("    s_lshl_b32 s34, s34, 6")
        e(f"    s_add_u32 s34, s34, {WS_DIAG}")
        e("    v_mov_b32 v8, s34")
        e("    s_waitcnt lgkmcnt(0)")
        e("    s_mov_b64 exec, 1")
        for k in range(12):
            e(f"    v_mov_b32 v{12+k}, s{40+2*k}")
        e("    s_getreg_b32 s34, hwreg(HW_REG_XCC_ID)")
        e("    v_mov_b32 v24, s34")
        e("    v_mov_b32 v25, s36")
        e("    global_store_dwordx4 v8, v[12:15], s[14:15]")
        e("    global_store_dwordx4 v8, v[16:19], s[14:15] offset:16")
        e("    global_store_dwordx4 v8, v[20:23], s[14:15] offset:32")
        e("    global_store_dwordx2 v8, v[24:25], s[14:15] offset:48")
    e("L_end:")
    e("    s_endpgm")
    e("L_others:")
    if P["PFC"]:
        e("    s_getpc_b64 s[74:75]")
        e("L_pc:")
        e("    s_sub_u32 s74, s74, L_pc-L_wait_g")
        e("    s_subb_u32 s75, s75, 0")
        e("    v_lshlrev_b32 v8, 3, v3                ; lane*128")
        e("    v_min_u32 v8, L_end-L_wait_g, v8")
        e("    global_load_dword v63, v8, s[74:75]")
    if P["DRY"]:
        e("    s_mov_b64 s[72:73], 0")
        e("    s_mov_b64 exec, 0")
        e("    s_branch L_mlp")
    else:
        e("    s_branch L_wait_g")
    e("L_fallback:")
    e("    s_waitcnt vmcnt(0) lgkmcnt(0)")
    e("    v_bfe_u32 v4, v3, 4, 4                 ; j again")
    build_A()
    image_addr()
    e("    s_mov_b32 s36, 0")
    e("L_fb_loop:")
    for m in range(3):
        e(f"    buffer_load_dwordx4 v[{48+4*m}:{51+4*m}], v1, s[16:19], s36 offen offset:{256*m}")
    e("    s_waitcnt vmcnt(0)")
    for m in range(3):
        mfma_for(48 + 4 * m, m)
    e("    s_add_u32 s36, s36, 3072")
    e(f"    s_cmp_lt_u32 s36, {XBYTES}")
    e("    s_cbranch_scc1 L_fb_loop")
    e("    s_nop 7")
    acc_fold()
    e(f"    ds_write_b128 v60, v[16:19] offset:{L_PART}")
    gather_addr()
    gather_wd(range(6), 8)
    e(f"    ds_read_b128 v[8:11], v3 offset:{L_PART}")
    e("    s_waitcnt lgkmcnt(0)")
    e("    s_mov_b32 exec_lo, 0x77777777")
    e("    s_mov_b32 exec_hi, 0x77777777")
    e("    s_branch L_mlp")
    e('.section .rodata,"a"')
    e(".p2align 6")
    e(f".amdhsa_kernel {NAME}_kernel")
    e("  .amdhsa_next_free_vgpr 256")
    e("  .amdhsa_next_free_sgpr 80")
    e("  .amdhsa_accum_offset 256")
    e("  .amdhsa_group_segment_fixed_size 0")
    e("  .amdhsa_kernarg_size 48")
    e("  .amdhsa_user_sgpr_count 2")
    e("  .amdhsa_user_sgpr_kernarg_segment_ptr 1")
    e("  .amdhsa_system_sgpr_workgroup_id_x 1")
    e("  .amdhsa_float_denorm_mode_32 3")
    e("  .amdhsa_float_denorm_mode_16_64 3")
    e(".end_amdhsa_kernel")
    return "\n".join(o) + "\n"


def parse_args(argv):
    out = None
    kw = {}
    for a in argv:
        if "=" in a:
            k, v = a.split("=", 1)
            try:
                v = int(v)
            except ValueError:
                v = v.replace("+", " ")
            kw[k] = v
        else:
            out = a
    return out, kw


if __name__ == "__main__":
    out, kw = parse_args(sys.argv[1:])
    txt = gen(**kw)
    if out:
        open(out, "w").write(txt)
    else:
        sys.stdout.write(txt)
```

```python
import sys
import math

NAME = "standalone__channel_attn_se__vision"
XBYTES = 512 * 512 * 192 * 2

DEFAULTS = dict(
    LDF="nt",
    STF="sc0 sc1",
    DIAG=0,
    FLAGBACK=14,
    SLEEP=0,
    POLLMAX=8192,
    FORCE_FALLBACK=0,
    NE=18,
    WE=3,
    WO="2.5",
    REPSH=3,
    R=4,
    MEAS=0,
    TRIG=0,
    KACC=3,
    TRAIL=1,
    HEAD=6,
    GRP=1,
    PRIO=1,
    DRYW=2,
    WS=0,
    PIPE=0,
    REPL=0,
    REPS=0,
    PRE=0,
    DRY=1,
    PFC=1,
    TAILE=6,
    TAILO=4,
    TR=1,
)

L_PART = 0x0000
L_S = 0x2000
L_G = 0x2400
L_WD = 0x3000
L_WU = 0x5000
L_X = 0x7000

WS_ACC = 0
WS_F = 16384
WS_DIAG = 65536


def gen(**kw):
    P = dict(DEFAULTS)
    P.update(kw)
    o = []
    e = o.append
    R = P["R"]
    assert R in (1, 2, 4, 8)
    NE = P["NE"]
    NO = 32 - NE
    NX = NE - 16
    assert 0 <= NX <= NO
    LDS_BYTES = L_X + 8 * NX * 3072
    step = 2048 * 3072
    bstep = 1024 * 3072

    def stamp(k):
        if P["DIAG"]:
            e(f"    s_memrealtime s[{40+2*k}:{41+2*k}]")

    def build_A():
        e("    v_and_b32 v16, 1, v4")
        e("    v_cmp_eq_u32 vcc, 1, v16")
        e("    v_mov_b32 v17, 0x3f80")
        e("    v_mov_b32 v18, 0x3f800000")
        e("    v_cndmask_b32 v17, v17, v18, vcc")
        e("    v_lshrrev_b32 v16, 1, v4               ; j>>1")
        for q in range(8):
            e(f"    v_cmp_eq_u32 vcc, {q}, v16")
            e("    s_nop 1")
            e(f"    v_cndmask_b32 v{8+q}, 0, v17, vcc")
        for q in range(12):
            e(f"    v_mov_b32 v{16+q}, 0")
        e("    v_mov_b32 v28, 0x3e000000")

    def image_addr():
        e("    v_lshrrev_b32 v60, 1, v5")
        e("    v_lshlrev_b32 v60, 5, v60")
        e("    v_lshl_add_u32 v60, v4, 1, v60")
        e("    v_and_b32 v61, 1, v5")
        e("    v_add_u32 v60, v60, v61                ; slot = 32*(g4>>1) + 2j + (g4&1)")
        e("    v_mul_u32_u24 v61, 43, v60")
        e("    v_lshrrev_b32 v61, 7, v61              ; slot/3")
        e("    v_add_u32 v61, v60, v61")
        e("    v_lshlrev_b32 v63, 2, v60")
        e("    v_subrev_u32 v63, 189, v63")
        e("    v_cmp_gt_u32 vcc, 48, v60")
        e("    s_nop 1")
        e("    v_cndmask_b32 v60, v63, v61, vcc")
        e("    v_lshlrev_b32 v60, 4, v60")

    def mfma_for(d, m):
        if m == 0:
            e(f"    v_mfma_f32_16x16x32_bf16 v[16:19], v[8:11], v[{d}:{d+3}], v[16:19]")
        elif m == 1:
            e(f"    v_mfma_f32_16x16x32_bf16 v[16:19], v[12:15], v[{d}:{d+3}], v[16:19]")
            e(f"    v_mfma_f32_16x16x32_bf16 v[24:27], v[8:11], v[{d}:{d+3}], v[24:27]")
        else:
            e(f"    v_mfma_f32_16x16x32_bf16 v[24:27], v[12:15], v[{d}:{d+3}], v[24:27]")
            e(f"    v_mfma_f32_16x16x32_bf16 v[20:23], v[8:11], v[{d}:{d+3}], v[20:23]")

    def acc_fold():
        for r in range(4):
            e(f"    v_add_f32_dpp v{16+r}, v{24+r}, v{16+r} row_ror:8 row_mask:0xf bank_mask:0x3")
        for r in range(4):
            e(f"    v_add_f32_dpp v{16+r}, v{20+r}, v{16+r} row_ror:8 row_mask:0x3 bank_mask:0xc")
        e("    v_mov_b32_dpp v16, v28 quad_perm:[0,1,2,3] row_mask:0xc bank_mask:0xc")

    def gather_addr():
        if P["TR"]:
            e("    v_mul_u32_u24 v63, 192, v5")
            e("    v_lshrrev_b32 v59, 2, v4")
            e("    v_mad_u32_u24 v63, v59, 24, v63")
            e("    v_and_b32 v59, 3, v4")
            e("    v_lshl_add_u32 v63, v59, 3, v63")
        else:
            e("    v_mul_u32_u24 v63, 192, v5")
            e("    v_lshl_add_u32 v63, v4, 1, v63")

    def gather_wd(kks, tmp):
        if P["TR"]:
            for kk in kks:
                for h in range(2):
                    d = 24 + 4 * kk + 2 * h
                    e(f"    ds_read_b64_tr_b16 v[{d}:{d+1}], v63 offset:{L_WD + 768 * kk + 96 * h}")
            return
        for kk in kks:
            for q in range(4):
                off = L_WD + 768 * kk + 48 * q
                e(f"    ds_read_u16 v{tmp+2*q}, v63 offset:{off}")
                e(f"    ds_read_u16 v{tmp+1+2*q}, v63 offset:{off+24}")
            e("    s_waitcnt lgkmcnt(0)")
            for q in range(4):
                e(f"    v_lshl_or_b32 v{24+4*kk+q}, v{tmp+1+2*q}, 16, v{tmp+2*q}")

    e(f"; @launch grid=(256,1,1) block=(512,1,1) lds={LDS_BYTES}")
    e('.amdgcn_target "amdgcn-amd-amdhsa--gfx950"')
    e(".text")
    e(f".globl {NAME}_kernel")
    e(".p2align 8")
    e(f".type {NAME}_kernel,@function")
    e(f"{NAME}_kernel:")
    e("    s_load_dwordx8 s[4:11], s[0:1], 0")
    e("    s_load_dwordx4 s[12:15], s[0:1], 32")
    stamp(0)
    e("    s_cmp_ge_u32 s2, 256")
    e("    s_cbranch_scc1 L_end")
    e("    v_and_b32 v2, 63, v0                   ; lane")
    e("    v_lshrrev_b32 v3, 6, v0")
    e("    v_and_b32 v4, 15, v0                   ; j")
    e("    v_bfe_u32 v5, v0, 4, 2                 ; g4")
    e("    v_mul_u32_u24 v1, 768, v5")
    e("    v_lshl_add_u32 v1, v4, 4, v1           ; 768*g4 + 16*j")
    e("    v_readfirstlane_b32 s3, v3")
    e("    v_lshlrev_b32 v6, 4, v0")
    e("    v_mul_u32_u24 v7, 768, v3")
    e("    v_lshl_add_u32 v7, v2, 3, v7")
    e("    v_lshlrev_b32 v3, 4, v2                ; lane*16")
    e("    s_lshl_b32 s33, s2, 3")
    e("    s_add_u32 s33, s33, s3")
    GRP = P["GRP"]
    assert NO % GRP == 0 and (NE - NO) % GRP == 0
    e(f"    s_mul_i32 s33, s33, {3072 * GRP}")
    e("    s_lshr_b32 s37, s2, 1")
    e("    s_lshl_b32 s37, s37, 3")
    e("    s_add_u32 s37, s37, s3")
    e(f"    s_mul_i32 s37, s37, {3072 * GRP}")
    e(f"    s_add_u32 s37, s37, {NO * step}")
    e("    s_mov_b32 s18, %d" % XBYTES)
    e("    s_mov_b32 s19, 0x00020000")
    e("    s_mov_b32 s22, %d" % XBYTES)
    e("    s_mov_b32 s23, 0x00020000")
    e("    s_mov_b32 s26, 4608")
    e("    s_mov_b32 s27, 0x00020000")
    e("    s_mov_b32 s30, 4608")
    e("    s_mov_b32 s31, 0x00020000")
    e("    s_waitcnt lgkmcnt(0)")
    e("    s_mov_b32 s16, s4")
    e("    s_mov_b32 s17, s5")
    e("    s_mov_b32 s24, s6")
    e("    s_mov_b32 s25, s7")
    e("    s_mov_b32 s28, s8")
    e("    s_mov_b32 s29, s9")
    e("    s_mov_b32 s20, s10")
    e("    s_mov_b32 s21, s11")
    stamp(11)
    if P["MEAS"]:
        e("    s_memrealtime s[40:41]")
        e("    s_waitcnt lgkmcnt(0)")
        e("    s_cmp_lg_u32 s3, 0")
        e("    s_cbranch_scc1 L_ms0")
        e("    s_not_b32 s42, s40")
        e("    v_mov_b32 v56, s42")
        e("    v_mov_b32 v57, 192")
        e("    s_mov_b64 exec, 1")
        e("    global_atomic_umax v57, v56, s[12:13]")
        e("    s_mov_b64 exec, -1")
        e("L_ms0:")
    if P["PRE"]:
        e("    s_cmp_lg_u32 s3, 7")
        e("    s_cbranch_scc1 L_nopre")
        e("    v_lshlrev_b32 v56, 21, v2")
        if P["PRE"] & 1:
            e("    buffer_load_dword v57, v56, s[16:19], 0 offen nt")
        if P["PRE"] & 2:
            e("    buffer_load_dword v58, v56, s[20:23], 0 offen nt")
        e("L_nopre:")

    def setup_misc(tag):
        e("    buffer_load_dwordx4 v[48:51], v6, s[24:27], 0 offen")
        e("    buffer_load_dwordx2 v[52:53], v7, s[28:31], 0 offen")
        e("    buffer_load_dwordx2 v[54:55], v7, s[28:31], 0 offen offset:384")
        e(f"    s_add_u32 s4, s14, {WS_F}")
        e("    s_addc_u32 s5, s15, 0")
        e(f"    s_add_u32 s6, s14, {WS_F + 4096}")
        e("    s_addc_u32 s7, s15, 0")
        e("    v_mov_b32 v62, 0")
        if tag == "e":
            e("    s_or_b32 s34, s2, s3")
            e("    s_cmp_lg_u32 s34, 0")
            e("    s_cbranch_scc1 L_noinit")
            for q in range(4):
                e(f"    v_mov_b32 v{8+q}, 0")
            e("    v_lshrrev_b32 v12, 2, v2")
            e("    v_lshlrev_b32 v12, 7, v12")
            e("    v_and_b32 v13, 3, v2")
            e("    v_lshl_add_u32 v12, v13, 4, v12")
            for r in range(R):
                if r and r % 2 == 0:
                    e("    v_add_u32 v12, 4096, v12")
                e(f"    global_store_dwordx4 v12, v[8:11], s[14:15] offset:{WS_ACC + (r % 2) * 2048} sc1")
            for r in range(R):
                b = "s[4:5]" if r < 4 else "s[6:7]"
                e(f"    global_store_dwordx4 v3, v[8:11], {b} offset:{(r % 4) * 1024} sc1")
            e("    v_mov_b32 v13, 1")
            e("    s_waitcnt vmcnt(0)")
            e("    s_mov_b64 exec, 1")
            e("    global_store_dword v62, v13, s[12:13] sc1")
            e("    s_mov_b64 exec, -1")
            e("L_noinit:")
        build_A()
        image_addr()
        e("    s_lshl_b32 s34, s3, 10")
        e("    v_add_u32 v60, s34, v60")
        if NX:
            e(f"    s_mul_i32 s34, s3, {NX * 3072}")
            e(f"    s_add_u32 s34, s34, {L_X}")
            e("    v_add_u32 v0, s34, v3")

    def stage_weights():
        e("    s_mov_b32 s34, 0x05040100")
        e("    s_mov_b32 s35, 0x07060302")
        e(f"    ds_write_b128 v6, v[48:51] offset:{L_WD}")
        e("    v_perm_b32 v56, v54, v52, s34")
        e("    v_perm_b32 v57, v54, v52, s35")
        e("    v_perm_b32 v58, v55, v53, s34")
        e("    v_perm_b32 v59, v55, v53, s35")
        e(f"    ds_write_b128 v6, v[56:59] offset:{L_WU}")
        e("    v_add_u32 v61, 16, v4")
        e("    v_subrev_u32 v63, 24, v61")
        e("    v_min_u32 v61, v61, v63                ; (16+j) mod 24")
        e("    v_lshlrev_b32 v7, 5, v61")
        e(f"    v_add_u32 v7, {L_G}, v7")
        e("    v_lshlrev_b32 v6, 5, v4")
        e(f"    v_add_u32 v6, {L_G}, v6")

    def flag_load(tag):
        e("    s_cmp_lg_u32 s3, 0")
        e(f"    s_cbranch_scc1 L_noflagld{tag}")
        e("    global_load_dword v61, v62, s[12:13] sc1")
        e(f"L_noflagld{tag}:")

    def consume(i, park):
        t, m = divmod(i, 3)
        d = 64 + 12 * (t % 16) + 4 * m
        mfma_for(d, m)
        if t < park:
            e(f"    ds_write_b128 v0, v[{d}:{d+3}] offset:{3072 * t + 1024 * m}")

    def set_off(t):
        if t < NO:
            e(f"    s_add_u32 s32, s33, {(t // GRP) * GRP * step + (t % GRP) * 3072}")
        else:
            e(f"    s_add_u32 s32, s37, {((t - NO) // GRP) * GRP * bstep + ((t - NO) % GRP) * 3072}")

    def load_path(N, W, tag, tail):
        NL = 3 * N
        park = max(0, N - 16)
        Wf = float(W)
        W = min(int(math.ceil(Wf)), NL - 1, 40)
        frac = W - Wf if Wf < W else 0.0
        H = max(W, P["HEAD"])
        fpos = NL - P["FLAGBACK"] - tail
        assert fpos > H + 1

        def wait_for(k, issued):
            e(f"    s_waitcnt vmcnt({issued - 1 - k + (3 if k < H else 0)})")

        def use(k):
            consume(k, park)
            if k == H:
                stage_weights()
            if k == fpos and not P["TRAIL"]:
                flag_load(tag)

        def do_consume(k, issued):
            wait_for(k, issued)
            use(k)

        nc = 0
        for i in range(NL):
            t, m = divmod(i, 3)
            if i == H:
                setup_misc(tag)
            if m == 0:
                set_off(t)
            late = None
            if i >= H and i < NL - tail:
                tight = 1 if int(frac * (i + 1)) != int(frac * i) else 0
                last = i - W + tight
                while nc < last:
                    do_consume(nc, i)
                    nc += 1
                if nc == last:
                    wait_for(nc, i)
                    late = nc
                    nc += 1
            if i >= 48 and park:
                assert nc - (1 if late is not None else 0) > i - 48
                e("    s_waitcnt lgkmcnt(0)")
            d = 64 + 12 * (t % 16) + 4 * m
            e(f"    buffer_load_dwordx4 v[{d}:{d+3}], v1, s[16:19], s32 offen offset:{256*m} {P['LDF']}")
            if late is not None:
                use(late)
        stamp(1)
        extra = 0
        if P["TRAIL"]:
            assert nc > H + 1
            e("    global_load_dword v61, v62, s[12:13] sc1")
            e("    global_load_dword v47, v62, s[6:7] offset:4092 sc1")
            extra = 2
        for k in range(nc, NL):
            do_consume(k, NL + extra)

    e("    s_bitcmp1_b32 s2, 0")
    e("    s_cbranch_scc1 L_acc_odd")
    load_path(NE, P["WE"], "e", P["TAILE"])
    e("    s_branch L_acc_done")
    e("L_acc_odd:")
    load_path(NO, P["WO"], "o", P["TAILO"])
    e("L_acc_done:")
    if P["REPL"]:
        assert NE == 16
        for i in range(48):
            t, m = divmod(i, 3)
            if m == 0:
                e("    s_mov_b32 s32, s33" if t == 0 else f"    s_add_u32 s32, s32, {step}")
            e(f"    s_waitcnt vmcnt({P['REPL'] - 1})")
            d = 64 + 4 * i
            e(f"    buffer_load_dwordx4 v[{d}:{d+3}], v1, s[16:19], s32 offen offset:{256*m} {P['LDF']}")
        e("    s_waitcnt vmcnt(0)")
    stamp(2)
    e("    s_nop 6")
    acc_fold()
    e(f"    ds_write_b128 v60, v[16:19] offset:{L_PART}")
    e("    s_waitcnt lgkmcnt(0)")
    e("    s_barrier                              ; B2")
    e("    s_mov_b64 s[72:73], -1")
    e("    s_cmp_lg_u32 s3, 0")
    e("    s_cbranch_scc1 L_others")
    if P["PRIO"]:
        e("    s_setprio 3")
    stamp(3)
    e("    v_lshlrev_b32 v60, 2, v2               ; lane*4")
    for n in range(4):
        for wp in range(4):
            d = 8 + 8 * n + 2 * wp
            e(f"    ds_read2st64_b32 v[{d}:{d+1}], v60 offset0:{8*wp+n} offset1:{8*wp+4+n}")
    e(f"    s_lshr_b32 s34, s2, {P['REPSH']}")
    e(f"    s_and_b32 s34, s34, {R-1}              ; replica")
    e("    s_lshl_b32 s35, s34, 11")
    e("    v_lshlrev_b32 v48, 7, v5")
    e("    v_lshl_add_u32 v48, v4, 2, v48")
    e("    v_add_u32 v48, s35, v48")
    e("    s_lshl_b32 s35, s34, 10")
    e("    v_add_u32 v49, s35, v60")
    gather_addr()
    e(f"    s_mov_b32 s36, {P['POLLMAX']}")
    e("    s_mov_b32 s8, 0x1fff1fff")
    e("    s_mov_b32 s9, 0x1fff1fff")
    e("    s_mov_b32 s10, 0x0fff0fff")
    e("    s_mov_b32 s11, 0x0fff0fff")
    e(f"    v_mov_b32 v58, {float(256 // R - 1)}")
    if P["TRIG"]:
        assert R == 4
        e("    v_lshrrev_b32 v59, 2, v2")
        e("    v_lshlrev_b32 v59, 7, v59")
        e("    v_and_b32 v60, 3, v2")
        e("    v_lshl_add_u32 v59, v60, 4, v59")
        e("    s_add_u32 s38, s14, 4096")
        e("    s_addc_u32 s39, s15, 0")
        e("    s_mov_b32 s76, 0x88888888")
        e("    s_mov_b32 s77, 0x88888888")
    e("L_flagcheck:")
    e("    s_waitcnt vmcnt(0)")
    e("    v_readfirstlane_b32 s35, v61")
    e("    s_cmp_lg_u32 s35, 0")
    e("    s_cbranch_scc1 L_flagok")
    e("    s_sub_u32 s36, s36, 1")
    e("    s_cbranch_scc1 L_fallback")
    e("    s_sleep 4")
    e("    global_load_dword v61, v62, s[12:13] sc1")
    e("    s_branch L_flagcheck")
    e("L_flagok:")
    stamp(4)
    e("    s_waitcnt lgkmcnt(0)")
    for n in range(4):
        b = 8 + 8 * n
        e(f"    v_pk_add_f32 v[{b}:{b+1}], v[{b}:{b+1}], v[{b+2}:{b+3}]")
        e(f"    v_pk_add_f32 v[{b+4}:{b+5}], v[{b+4}:{b+5}], v[{b+6}:{b+7}]")
    for n in range(4):
        b = 8 + 8 * n
        e(f"    v_pk_add_f32 v[{b}:{b+1}], v[{b}:{b+1}], v[{b+4}:{b+5}]")
    for n in range(4):
        b = 8 + 8 * n
        e(f"    v_add_f32 v{50+n}, v{b}, v{b+1}")
    e("    s_mov_b64 exec, s[8:9]")
    for n in range(4):
        e(f"    global_atomic_add_f32 v{54+n if n < 4 else 0}, v48, v{50+n}, s[14:15] offset:{WS_ACC + 512*n} sc0")
    e("    s_mov_b64 exec, -1")
    if P["TRIG"]:
        e("    global_load_dword v61, v62, s[12:13] offset:128 sc1")
    gather_wd(range(6), 8)
    e(f"    s_mov_b32 s36, {P['POLLMAX']}")
    e("    s_waitcnt vmcnt(0)")
    stamp(5)
    for n in range(4):
        e(f"    v_mov_b32_dpp v{8+n}, v{54+n} row_newbcast:12 row_mask:0xf bank_mask:0xf")
    for n in range(4):
        e(f"    v_add_f32 v{50+n}, v{50+n}, v{54+n}")
    for n in range(4):
        e(f"    v_cmp_eq_f32 s[{64+2*n}:{65+2*n}], v{8+n}, v58")
    for n in range(4):
        e(f"    v_or_b32 v{50+n}, 1, v{50+n}")
    for n in range(4):
        e(f"    s_and_b64 exec, s[{64+2*n}:{65+2*n}], s[10:11]")
        e(f"    s_cbranch_execz L_nopush{n}")
        e(f"    global_atomic_or v49, v{50+n}, s[4:5] offset:{256*n}")
        e(f"L_nopush{n}:")
    e("    s_mov_b64 exec, -1")
    if P["FORCE_FALLBACK"]:
        e("    s_branch L_fallback")
    if P["TRIG"]:
        import struct as _st
        tbits = _st.unpack("<I", _st.pack("<f", float(P["TRIG"] - 1)))[0]
        e("    v_readlane_b32 s35, v54, 12")
        e("    v_mov_b32 v60, 1")
        e(f"    s_cmp_lg_u32 s35, {tbits}")
        e("    s_cbranch_scc1 L_trigcheck")
        e("    s_cmp_lg_u32 s34, 0")
        e("    s_cbranch_scc1 L_trigcheck")
        e("    s_mov_b64 exec, 1")
        e("    global_store_dword v62, v60, s[12:13] offset:128 sc1   ; trigger")
        e("    s_mov_b64 exec, -1")
        e("L_trigwait:")
        e("    global_load_dword v61, v62, s[12:13] offset:128 sc1")
        e("    s_waitcnt vmcnt(0)")
        e("L_trigcheck:")
        e("    v_readfirstlane_b32 s35, v61")
        e("    s_cmp_lg_u32 s35, 0")
        e("    s_cbranch_scc1 L_accpoll0")
        e("    s_sub_u32 s36, s36, 1")
        e("    s_cbranch_scc0 L_trigwait")
        e("    s_branch L_fallback")
        e("L_accpoll0:")
        e(f"    s_mov_b32 s35, {P['KACC'] - 1}")
        e("L_accpoll:")
        for r in range(4):
            b = "s[14:15]" if r < 2 else "s[38:39]"
            e(f"    global_load_dwordx4 v[{8+4*r}:{11+4*r}], v59, {b} offset:{WS_ACC + (r % 2) * 2048} sc1")
        for r in range(1, 4):
            e(f"    s_waitcnt vmcnt({3-r})")
            e(f"    v_pk_add_f32 v[8:9], v[8:9], v[{8+4*r}:{9+4*r}]")
            e(f"    v_pk_add_f32 v[10:11], v[10:11], v[{10+4*r}:{11+4*r}]")
        e("    v_cmp_neq_f32 vcc, 0x43800000, v8")
        e("    s_mov_b32 exec_lo, 0x77777777")
        e("    s_mov_b32 exec_hi, 0x77777777")
        e("    s_and_b64 vcc, vcc, s[76:77]")
        e("    s_cbranch_scc0 L_pollok")
        e("    s_mov_b64 exec, -1")
        e("    s_sub_u32 s35, s35, 1")
        e("    s_cbranch_scc0 L_accpoll")
    e("    s_mov_b32 exec_lo, 0x77777777")
    e("    s_mov_b32 exec_hi, 0x77777777")
    rep_regs = [8, 12, 16, 20, 48, 52, 56, 60]

    def poll_issue(regs):
        for r in range(R):
            d = regs[r]
            b = "s[4:5]" if r < 4 else "s[6:7]"
            e(f"    global_load_dwordx4 v[{d}:{d+3}], v3, {b} offset:{(r % 4) * 1024} sc1")

    def poll_check(regs, later):
        a = regs[0]
        e(f"    s_waitcnt vmcnt({R-1+later})")
        e(f"    v_and_b32 v2, v{a}, v{a+1}")
        e(f"    v_and_b32 v4, v{a+2}, v{a+3}")
        for r in range(1, R):
            e(f"    s_waitcnt vmcnt({R-1-r+later})")
            d = regs[r]
            e(f"    v_bitop3_b32 v2, v2, v{d}, v{d+1} bitop3:0x80")
            e(f"    v_bitop3_b32 v4, v4, v{d+2}, v{d+3} bitop3:0x80")
            e(f"    v_pk_add_f32 v[{a}:{a+1}], v[{a}:{a+1}], v[{d}:{d+1}]")
            e(f"    v_pk_add_f32 v[{a+2}:{a+3}], v[{a+2}:{a+3}], v[{d+2}:{d+3}]")
        e("    v_bitop3_b32 v2, v2, v4, 1 bitop3:0x80")
        e("    v_cmp_ne_u32 vcc, 1, v2")

    if P["PIPE"]:
        assert R <= 4
        A, B = rep_regs[:4], rep_regs[4:]
        poll_issue(A)
        e("L_poll:")
        poll_issue(B)
        poll_check(A, R)
        e("    s_cbranch_vccz L_pollokA")
        poll_issue(A)
        poll_check(B, R)
        e("    s_cbranch_vccz L_pollokB")
        e("    s_sub_u32 s36, s36, 1")
        e("    s_cbranch_scc0 L_poll")
        e("    s_mov_b64 exec, -1")
        e("    s_branch L_fallback")
        e("L_pollokB:")
        e("    s_waitcnt vmcnt(0)")
        for q in range(4):
            e(f"    v_mov_b32 v{8+q}, v{48+q}")
        e("L_pollokA:")
        e("    s_waitcnt vmcnt(0)")
    else:
        e("L_poll:")
        poll_issue(rep_regs)
        poll_check(rep_regs, 0)
        e("    s_cbranch_vccz L_pollok")
        if P["SLEEP"]:
            e(f"    s_sleep {P['SLEEP']}")
        e("    s_sub_u32 s36, s36, 1")
        e("    s_cbranch_scc0 L_poll")
        e("    s_mov_b64 exec, -1")
        e("    s_branch L_fallback")
    e("L_pollok:")
    stamp(6)
    e("L_mlp:")
    stamp(7)
    e("    s_mov_b32 s34, 0x36800000              ; 2^-18")
    e("    s_mov_b32 s35, 0x36800000")
    e("    v_pk_mul_f32 v[8:9], v[8:9], s[34:35]")
    e("    v_pk_mul_f32 v[10:11], v[10:11], s[34:35]")
    e("    v_cvt_pk_bf16_f32 v8, v8, v9")
    e("    v_cvt_pk_bf16_f32 v9, v10, v11")
    e("    v_lshrrev_b32 v10, 1, v3               ; 8q")
    e("    v_lshrrev_b32 v11, 6, v3               ; q>>2")
    e("    v_lshlrev_b32 v11, 3, v11")
    e("    v_sub_u32 v10, v10, v11                ; 24*(q>>2) + 8*(q&3)")
    e(f"    ds_write_b64 v10, v[8:9] offset:{L_S}")
    e("    s_mov_b64 exec, s[72:73]")
    e("    v_lshlrev_b32 v10, 4, v5               ; 16*g4")
    sregs = [12, 16, 20, 48, 52, 56]
    for kk in range(6):
        d = sregs[kk]
        e(f"    ds_read_b128 v[{d}:{d+3}], v10 offset:{L_S + 64*kk}")
    for kk in range(6):
        d = sregs[kk]
        w = 24 + 4 * kk
        e(f"    s_waitcnt lgkmcnt({5-kk})" if not P["DIAG"] else "    s_waitcnt lgkmcnt(0)")
        c = "0" if kk == 0 else "v[8:11]"
        e(f"    v_mfma_f32_16x16x32_bf16 v[8:11], v[{d}:{d+3}], v[{w}:{w+3}], {c}")
    for p in range(6):
        e(f"    ds_read_b128 v[{24+4*p}:{27+4*p}], v3 offset:{L_WU + 1024*p}")
    e("    s_mov_b32 s34, 0xbfb8aa3b              ; -log2(e)")
    e("    s_mov_b32 s35, 0xbfb8aa3b")
    e("    s_nop 1")
    e("    v_cvt_pk_bf16_f32 v8, v8, v8")
    e("    v_lshlrev_b32 v8, 16, v8")
    e("    v_mul_f32 v9, s34, v8")
    e("    v_exp_f32 v9, v9")
    e("    s_nop 0")
    e("    v_add_f32 v9, 1.0, v9")
    e("    v_rcp_f32 v9, v9")
    e("    s_nop 0")
    e("    v_mul_f32 v8, v8, v9                   ; silu")
    e("    s_nop 1")
    e("    v_mov_b32_dpp v9, v8 quad_perm:[1,0,3,2] row_mask:0xf bank_mask:0xf")
    e("    v_cvt_pk_bf16_f32 v8, v8, v9           ; even lanes: {h[j], h[j+1]}")
    e("    s_nop 0")
    for p in range(6):
        e(f"    v_readlane_b32 s{64+p}, v8, {2*p}")
    e("    s_waitcnt lgkmcnt(0)")
    for p in range(6):
        for n in range(4):
            c = "0" if p == 0 else f"v{12+n}"
            e(f"    v_dot2_f32_bf16 v{12+n}, v{24+4*p+n}, s{64+p}, {c}")
    e("    s_nop 2")
    e("    v_cvt_pk_bf16_f32 v8, v12, v13")
    e("    v_cvt_pk_bf16_f32 v9, v14, v15")
    e("    v_lshlrev_b32 v12, 16, v8")
    e("    v_and_b32 v13, 0xffff0000, v8")
    e("    v_lshlrev_b32 v14, 16, v9")
    e("    v_and_b32 v15, 0xffff0000, v9")
    e("    v_pk_mul_f32 v[12:13], v[12:13], s[34:35]")
    e("    v_pk_mul_f32 v[14:15], v[14:15], s[34:35]")
    for n in range(4):
        e(f"    v_exp_f32 v{12+n}, v{12+n}")
    e("    s_nop 0")
    for n in range(4):
        e(f"    v_add_f32 v{12+n}, 1.0, v{12+n}")
    for n in range(4):
        e(f"    v_rcp_f32 v{12+n}, v{12+n}")
    e("    s_nop 0")
    e("    v_cvt_pk_bf16_f32 v8, v12, v13")
    e("    v_cvt_pk_bf16_f32 v9, v14, v15")
    e("    v_lshlrev_b32 v12, 16, v8")
    e("    v_and_b32 v13, 0xffff0000, v8")
    e("    v_lshlrev_b32 v14, 16, v9")
    e("    v_and_b32 v15, 0xffff0000, v9")
    e(f"    ds_write_b128 v3, v[12:15] offset:{L_G}")
    e("    s_waitcnt lgkmcnt(0)")
    stamp(8)
    e("    s_mov_b64 exec, -1")
    if P["PRIO"]:
        e("    s_setprio 0")
    e("L_wait_g:")
    e("    s_waitcnt vmcnt(0)")
    e("    s_barrier                              ; B3")
    if P["MEAS"]:
        e("    s_memrealtime s[44:45]")
    e("    ds_read_b128 v[24:27], v6")
    e("    ds_read_b128 v[28:31], v6 offset:16")
    e("    ds_read_b128 v[32:35], v7")
    e("    ds_read_b128 v[36:39], v7 offset:16")
    e("    ds_read_b128 v[40:43], v6 offset:256")
    e("    ds_read_b128 v[44:47], v6 offset:272")
    e("    s_mov_b32 s34, 0xffff0000")
    cnt = [0]

    def store_unit(slot):
        for m in range(3):
            d = 64 + 12 * slot + 4 * m
            g = 24 + 8 * m
            tb = 8 + 8 * (cnt[0] % 2)
            cnt[0] += 1
            for q in range(4):
                e(f"    v_lshlrev_b32 v{tb+2*q}, 16, v{d+q}")
                e(f"    v_and_b32 v{tb+2*q+1}, s34, v{d+q}")
            for q in range(4):
                e(f"    v_pk_mul_f32 v[{tb+2*q}:{tb+2*q+1}], v[{tb+2*q}:{tb+2*q+1}], v[{g+2*q}:{g+2*q+1}]")
            for q in range(4):
                e(f"    v_cvt_pk_bf16_f32 v{d+q}, v{tb+2*q}, v{tb+2*q+1}")
            if P["WS"]:
                e(f"    s_waitcnt vmcnt({P['WS'] - 1})")
            e(f"    buffer_store_dwordx4 v[{d}:{d+3}], v1, s[20:23], s32 offen offset:{256*m} {P['STF']}")

    e("    s_waitcnt lgkmcnt(0)")
    if NE > NO:
        e("    s_bitcmp1_b32 s2, 0")
        e("    s_cbranch_scc1 L_st_common")
        for t in range(NO, NE):
            set_off(t)
            store_unit(t % 16)
        e("    s_nop 1")
        for x in range(NX):
            for m in range(3):
                d = 64 + 12 * x + 4 * m
                e(f"    ds_read_b128 v[{d}:{d+3}], v0 offset:{3072 * x + 1024 * m}")
        e("L_st_common:")
    for t in range(NX, NO):
        set_off(t)
        store_unit(t)
    e("    s_waitcnt lgkmcnt(0)")
    for t in range(NX):
        set_off(t)
        store_unit(t)
    if P["REPS"]:
        assert NE == 16
        for i in range(48):
            t, m = divmod(i, 3)
            if m == 0:
                e("    s_mov_b32 s32, s33" if t == 0 else f"    s_add_u32 s32, s32, {step}")
            d = 64 + 4 * i
            e(f"    buffer_store_dwordx4 v[{d}:{d+3}], v1, s[20:23], s32 offen offset:{256*m} {P['STF']}")
    if P["DIAG"]:
        stamp(9)
        e("    s_waitcnt vmcnt(0)")
        stamp(10)
        e("    s_lshl_b32 s34, s2, 3")
        e("    s_add_u32 s34, s34, s3")
        e("    s_lshl_b32 s34, s34, 6")
        e(f"    s_add_u32 s34, s34, {WS_DIAG}")
        e("    v_mov_b32 v8, s34")
        e("    s_waitcnt lgkmcnt(0)")
        e("    s_mov_b64 exec, 1")
        for k in range(12):
            e(f"    v_mov_b32 v{12+k}, s{40+2*k}")
        e("    s_getreg_b32 s34, hwreg(HW_REG_XCC_ID)")
        e("    v_mov_b32 v24, s34")
        e("    v_mov_b32 v25, s36")
        e("    global_store_dwordx4 v8, v[12:15], s[14:15]")
        e("    global_store_dwordx4 v8, v[16:19], s[14:15] offset:16")
        e("    global_store_dwordx4 v8, v[20:23], s[14:15] offset:32")
        e("    global_store_dwordx2 v8, v[24:25], s[14:15] offset:48")
    if P["MEAS"]:
        e("    s_cmp_lg_u32 s3, 0")
        e("    s_cbranch_scc1 L_end")
        e("    v_mov_b32 v57, 192")
        e("    global_load_dword v56, v57, s[12:13] sc1")
        e("    s_waitcnt vmcnt(0)")
        e("    s_memrealtime s[46:47]")
        e("    v_readfirstlane_b32 s42, v56")
        e("    s_waitcnt lgkmcnt(0)")
        e("    s_not_b32 s42, s42")
        if P["MEAS"] == 1:
            e("    s_sub_u32 s43, s46, s42")
        elif P["MEAS"] == 2:
            e("    s_sub_u32 s43, s44, s42")
        elif P["MEAS"] == 3:
            e("    s_sub_u32 s43, s40, s42")
            e("    s_mul_i32 s43, s43, 10")
        else:
            e("    s_mov_b32 s43, 0")
        e("    s_min_u32 s43, s43, 100000")
        e("L_mspin:")
        e("    s_sleep 1")
        e("    s_memrealtime s[48:49]")
        e("    s_waitcnt lgkmcnt(0)")
        e("    s_sub_u32 s48, s48, s46")
        e("    s_cmp_lt_u32 s48, s43")
        e("    s_cbranch_scc1 L_mspin")
    e("L_end:")
    e("    s_endpgm")
    e("L_others:")
    if P["DRYW"] >= 0:
        e(f"    s_cmp_lg_u32 s3, {P['DRYW']}")
        e("    s_cbranch_scc1 L_wait_g")
    if P["PFC"]:
        e("    s_getpc_b64 s[74:75]")
        e("L_pc:")
        e("    s_sub_u32 s74, s74, L_pc-L_wait_g")
        e("    s_subb_u32 s75, s75, 0")
        e("    v_lshlrev_b32 v8, 3, v3                ; lane*128")
        e("    v_min_u32 v8, L_end-L_wait_g, v8")
        e("    global_load_dword v63, v8, s[74:75]")
    if P["DRY"]:
        e("    s_mov_b64 s[72:73], 0")
        e("    s_mov_b64 exec, 0")
        e("    s_branch L_mlp")
    else:
        e("    s_branch L_wait_g")
    e("L_fallback:")
    e("    s_waitcnt vmcnt(0) lgkmcnt(0)")
    e("    v_bfe_u32 v4, v3, 4, 4                 ; j again")
    build_A()
    image_addr()
    e("    s_mov_b32 s36, 0")
    e("L_fb_loop:")
    for m in range(3):
        e(f"    buffer_load_dwordx4 v[{48+4*m}:{51+4*m}], v1, s[16:19], s36 offen offset:{256*m}")
    e("    s_waitcnt vmcnt(0)")
    for m in range(3):
        mfma_for(48 + 4 * m, m)
    e("    s_add_u32 s36, s36, 3072")
    e(f"    s_cmp_lt_u32 s36, {XBYTES}")
    e("    s_cbranch_scc1 L_fb_loop")
    e("    s_nop 7")
    acc_fold()
    e(f"    ds_write_b128 v60, v[16:19] offset:{L_PART}")
    gather_addr()
    gather_wd(range(6), 8)
    e(f"    ds_read_b128 v[8:11], v3 offset:{L_PART}")
    e("    s_waitcnt lgkmcnt(0)")
    e("    s_mov_b32 exec_lo, 0x77777777")
    e("    s_mov_b32 exec_hi, 0x77777777")
    e("    s_branch L_mlp")
    e('.section .rodata,"a"')
    e(".p2align 6")
    e(f".amdhsa_kernel {NAME}_kernel")
    e("  .amdhsa_next_free_vgpr 256")
    e("  .amdhsa_next_free_sgpr 80")
    e("  .amdhsa_accum_offset 256")
    e("  .amdhsa_group_segment_fixed_size 0")
    e("  .amdhsa_kernarg_size 48")
    e("  .amdhsa_user_sgpr_count 2")
    e("  .amdhsa_user_sgpr_kernarg_segment_ptr 1")
    e("  .amdhsa_system_sgpr_workgroup_id_x 1")
    e("  .amdhsa_float_denorm_mode_32 3")
    e("  .amdhsa_float_denorm_mode_16_64 3")
    e(".end_amdhsa_kernel")
    return "\n".join(o) + "\n"


def parse_args(argv):
    out = None
    kw = {}
    for a in argv:
        if "=" in a:
            k, v = a.split("=", 1)
            try:
                v = int(v)
            except ValueError:
                v = v.replace("+", " ")
            kw[k] = v
        else:
            out = a
    return out, kw


if __name__ == "__main__":
    out, kw = parse_args(sys.argv[1:])
    txt = gen(**kw)
    if out:
        open(out, "w").write(txt)
    else:
        sys.stdout.write(txt)
```

```python
import sys
import math

NAME = "standalone__channel_attn_se__vision"
XBYTES = 512 * 512 * 192 * 2

DEFAULTS = dict(
    LDF="nt",
    STF="sc0 sc1",
    DIAG=0,
    FLAGBACK=14,
    SLEEP=0,
    POLLMAX=8192,
    FORCE_FALLBACK=0,
    NE=18,
    WE=3,
    WO="2.5",
    REPSH=3,
    R=4,
    LAY=0,
    MSEP=0,
    MAP="A",
    PL=0,
    PLF="",
    PF=0,
    MEAS=0,
    TRIG=0,
    KACC=3,
    TRAIL=1,
    HEAD=6,
    GRP=1,
    PRIO=1,
    DRYW=2,
    WS=0,
    PIPE=0,
    REPL=0,
    REPS=0,
    PRE=0,
    DRY=1,
    PFC=1,
    TAILE=6,
    TAILO=4,
    TR=1,
)

L_PART = 0x0000
L_S = 0x2000
L_G = 0x2400
L_WD = 0x3000
L_WU = 0x5000
L_X = 0x7000

WS_ACC = 0
WS_F = 16384
WS_DIAG = 65536


def gen(**kw):
    P = dict(DEFAULTS)
    P.update(kw)
    o = []
    e = o.append
    R = P["R"]
    assert R in (1, 2, 4, 8)
    NE = P["NE"]
    NO = 32 - NE
    NX = NE - 16
    assert 0 <= NX <= NO
    LDS_BYTES = L_X + 8 * NX * 3072
    step = 2048 * 3072
    bstep = 1024 * 3072
    if P["MAP"] == "B":
        step = bstep = 8 * 3072
    elif P["MAP"] == "X":
        step = 256 * 3072
        bstep = 128 * 3072

    def stamp(k):
        if P["DIAG"]:
            e(f"    s_memrealtime s[{40+2*k}:{41+2*k}]")

    LAY = P["LAY"]
    MOFF = 1024 if LAY else 256
    VOFF = "v3" if LAY else "v1"

    def build_A():
        e("    v_and_b32 v16, 1, v4")
        e("    v_cmp_eq_u32 vcc, 1, v16")
        e("    v_mov_b32 v17, 0x3f80")
        e("    v_mov_b32 v18, 0x3f800000")
        e("    v_cndmask_b32 v17, v17, v18, vcc")
        if LAY:
            e("    v_lshrrev_b32 v18, 3, v4")
            e("    v_add_u32 v19, 3, v5")
            e("    v_sub_u32 v19, v19, v18                ; g4 - half + 3  (2..6)")
            e("    v_mul_u32_u24 v20, 43, v19")
            e("    v_lshrrev_b32 v20, 7, v20")
            e("    v_mul_u32_u24 v20, 3, v20")
            e("    v_sub_u32 v19, v19, v20")
            e("    v_bfe_u32 v16, v4, 1, 2                ; (j>>1)&3")
            e("    v_lshl_add_u32 v16, v19, 2, v16")
            for q in range(12):
                e(f"    v_cmp_eq_u32 vcc, {q}, v16")
                e("    s_nop 1")
                e(f"    v_cndmask_b32 v{32+q}, 0, v17, vcc")
        else:
            e("    v_lshrrev_b32 v16, 1, v4               ; j>>1")
            for q in range(8):
                e(f"    v_cmp_eq_u32 vcc, {q}, v16")
                e("    s_nop 1")
                e(f"    v_cndmask_b32 v{8+q}, 0, v17, vcc")
        for q in range(12):
            e(f"    v_mov_b32 v{16+q}, 0")
        e("    v_mov_b32 v28, 0x3e000000")

    def image_addr():
        e("    v_lshrrev_b32 v60, 1, v5")
        e("    v_lshlrev_b32 v60, 5, v60")
        e("    v_lshl_add_u32 v60, v4, 1, v60")
        e("    v_and_b32 v61, 1, v5")
        e("    v_add_u32 v60, v60, v61                ; slot = 32*(g4>>1) + 2j + (g4&1)")
        e("    v_mul_u32_u24 v61, 43, v60")
        e("    v_lshrrev_b32 v61, 7, v61              ; slot/3")
        e("    v_add_u32 v61, v60, v61")
        e("    v_lshlrev_b32 v63, 2, v60")
        e("    v_subrev_u32 v63, 189, v63")
        e("    v_cmp_gt_u32 vcc, 48, v60")
        e("    s_nop 1")
        e("    v_cndmask_b32 v60, v63, v61, vcc")
        e("    v_lshlrev_b32 v60, 4, v60")

    def mfma_for(d, m):
        if LAY:
            for acc, c in ((16, 0), (24, 1), (20, 2)):
                a = 32 + 4 * ((c - m) % 3)
                e(f"    v_mfma_f32_16x16x32_bf16 v[{acc}:{acc+3}], v[{a}:{a+3}], v[{d}:{d+3}], v[{acc}:{acc+3}]")
            return
        if m == 0:
            e(f"    v_mfma_f32_16x16x32_bf16 v[16:19], v[8:11], v[{d}:{d+3}], v[16:19]")
        elif m == 1:
            e(f"    v_mfma_f32_16x16x32_bf16 v[16:19], v[12:15], v[{d}:{d+3}], v[16:19]")
            e(f"    v_mfma_f32_16x16x32_bf16 v[24:27], v[8:11], v[{d}:{d+3}], v[24:27]")
        else:
            e(f"    v_mfma_f32_16x16x32_bf16 v[24:27], v[12:15], v[{d}:{d+3}], v[24:27]")
            e(f"    v_mfma_f32_16x16x32_bf16 v[20:23], v[8:11], v[{d}:{d+3}], v[20:23]")

    def acc_fold():
        for r in range(4):
            e(f"    v_add_f32_dpp v{16+r}, v{24+r}, v{16+r} row_ror:8 row_mask:0xf bank_mask:0x3")
        for r in range(4):
            e(f"    v_add_f32_dpp v{16+r}, v{20+r}, v{16+r} row_ror:8 row_mask:0x3 bank_mask:0xc")
        e("    v_mov_b32_dpp v16, v28 quad_perm:[0,1,2,3] row_mask:0xc bank_mask:0xc")

    def gather_addr():
        if P["TR"]:
            e("    v_mul_u32_u24 v63, 192, v5")
            e("    v_lshrrev_b32 v59, 2, v4")
            e("    v_mad_u32_u24 v63, v59, 24, v63")
            e("    v_and_b32 v59, 3, v4")
            e("    v_lshl_add_u32 v63, v59, 3, v63")
        else:
            e("    v_mul_u32_u24 v63, 192, v5")
            e("    v_lshl_add_u32 v63, v4, 1, v63")

    def gather_wd(kks, tmp):
        if P["TR"]:
            for kk in kks:
                for h in range(2):
                    d = 24 + 4 * kk + 2 * h
                    e(f"    ds_read_b64_tr_b16 v[{d}:{d+1}], v63 offset:{L_WD + 768 * kk + 96 * h}")
            return
        for kk in kks:
            for q in range(4):
                off = L_WD + 768 * kk + 48 * q
                e(f"    ds_read_u16 v{tmp+2*q}, v63 offset:{off}")
                e(f"    ds_read_u16 v{tmp+1+2*q}, v63 offset:{off+24}")
            e("    s_waitcnt lgkmcnt(0)")
            for q in range(4):
                e(f"    v_lshl_or_b32 v{24+4*kk+q}, v{tmp+1+2*q}, 16, v{tmp+2*q}")

    e(f"; @launch grid=(256,1,1) block=(512,1,1) lds={LDS_BYTES}")
    e('.amdgcn_target "amdgcn-amd-amdhsa--gfx950"')
    e(".text")
    e(f".globl {NAME}_kernel")
    e(".p2align 8")
    e(f".type {NAME}_kernel,@function")
    e(f"{NAME}_kernel:")
    if P["MEAS"] >= 5:
        e("    s_memrealtime s[50:51]")
    e("    s_load_dwordx8 s[4:11], s[0:1], 0")
    e("    s_load_dwordx4 s[12:15], s[0:1], 32")
    stamp(0)
    e("    s_cmp_ge_u32 s2, 256")
    e("    s_cbranch_scc1 L_end")
    e("    v_and_b32 v2, 63, v0                   ; lane")
    e("    v_lshrrev_b32 v3, 6, v0")
    e("    v_and_b32 v4, 15, v0                   ; j")
    e("    v_bfe_u32 v5, v0, 4, 2                 ; g4")
    if not LAY:
        e("    v_mul_u32_u24 v1, 768, v5")
        e("    v_lshl_add_u32 v1, v4, 4, v1           ; 768*g4 + 16*j")
    e("    v_readfirstlane_b32 s3, v3")
    e("    v_lshlrev_b32 v6, 4, v0")
    e("    v_mul_u32_u24 v7, 768, v3")
    e("    v_lshl_add_u32 v7, v2, 3, v7")
    e("    v_lshlrev_b32 v3, 4, v2                ; lane*16")
    GRP = P["GRP"]
    assert NO % GRP == 0 and (NE - NO) % GRP == 0
    if P["MAP"] == "A":
        e("    s_lshl_b32 s33, s2, 3")
        e("    s_add_u32 s33, s33, s3")
        e(f"    s_mul_i32 s33, s33, {3072 * GRP}")
        e("    s_lshr_b32 s37, s2, 1")
        e("    s_lshl_b32 s37, s37, 3")
        e("    s_add_u32 s37, s37, s3")
        e(f"    s_mul_i32 s37, s37, {3072 * GRP}")
        e(f"    s_add_u32 s37, s37, {NO * step}")
    elif P["MAP"] == "M":
        e("    s_lshr_b32 s33, s2, 1")
        e("    s_lshl_b32 s33, s33, 3")
        e("    s_add_u32 s33, s33, s3")
        e("    s_mul_i32 s33, s33, 3072")
    elif P["MAP"] == "B":
        e("    s_lshr_b32 s33, s2, 1")
        e("    s_lshl_b32 s33, s33, 8")
        e("    s_and_b32 s34, s2, 1")
        e(f"    s_mul_i32 s34, s34, {8 * NE}")
        e("    s_add_u32 s33, s33, s34")
        e("    s_add_u32 s33, s33, s3")
        e("    s_mul_i32 s33, s33, 3072")
        e(f"    s_add_u32 s37, s33, {NO * step}")
    elif P["MAP"] == "X":
        e("    s_lshr_b32 s34, s2, 5")
        e(f"    s_mul_i32 s34, s34, {XBYTES // 8}")
        e("    s_and_b32 s35, s2, 31")
        e("    s_lshl_b32 s33, s35, 3")
        e("    s_add_u32 s33, s33, s3")
        e("    s_mul_i32 s33, s33, 3072")
        e("    s_add_u32 s33, s33, s34")
        e("    s_lshr_b32 s37, s35, 1")
        e("    s_lshl_b32 s37, s37, 3")
        e("    s_add_u32 s37, s37, s3")
        e("    s_mul_i32 s37, s37, 3072")
        e("    s_add_u32 s37, s37, s34")
        e(f"    s_add_u32 s37, s37, {NO * step}")
    e("    s_mov_b32 s18, %d" % XBYTES)
    e("    s_mov_b32 s19, 0x00020000")
    e("    s_mov_b32 s22, %d" % XBYTES)
    e("    s_mov_b32 s23, 0x00020000")
    e("    s_mov_b32 s26, 4608")
    e("    s_mov_b32 s27, 0x00020000")
    e("    s_mov_b32 s30, 4608")
    e("    s_mov_b32 s31, 0x00020000")
    e("    s_waitcnt lgkmcnt(0)")
    e("    s_mov_b32 s16, s4")
    e("    s_mov_b32 s17, s5")
    e("    s_mov_b32 s24, s6")
    e("    s_mov_b32 s25, s7")
    e("    s_mov_b32 s28, s8")
    e("    s_mov_b32 s29, s9")
    e("    s_mov_b32 s20, s10")
    e("    s_mov_b32 s21, s11")
    stamp(11)
    if P["MEAS"]:
        e("    s_memrealtime s[40:41]")
        e("    s_waitcnt lgkmcnt(0)")
        e("    s_cmp_lg_u32 s3, 0")
        e("    s_cbranch_scc1 L_ms0")
        e("    s_not_b32 s42, s40")
        e("    v_mov_b32 v56, s42")
        e("    v_mov_b32 v57, 192")
        e("    s_mov_b64 exec, 1")
        e("    global_atomic_umax v57, v56, s[12:13]")
        e("    s_mov_b64 exec, -1")
        e("L_ms0:")
    if P["PRE"]:
        e("    s_cmp_lg_u32 s3, 7")
        e("    s_cbranch_scc1 L_nopre")
        e("    v_lshlrev_b32 v56, 21, v2")
        if P["PRE"] & 1:
            e("    buffer_load_dword v57, v56, s[16:19], 0 offen nt")
        if P["PRE"] & 2:
            e("    buffer_load_dword v58, v56, s[20:23], 0 offen nt")
        e("L_nopre:")

    def setup_misc(tag):
        e("    buffer_load_dwordx4 v[48:51], v6, s[24:27], 0 offen")
        e("    buffer_load_dwordx2 v[52:53], v7, s[28:31], 0 offen")
        e("    buffer_load_dwordx2 v[54:55], v7, s[28:31], 0 offen offset:384")
        e(f"    s_add_u32 s4, s14, {WS_F}")
        e("    s_addc_u32 s5, s15, 0")
        e(f"    s_add_u32 s6, s14, {WS_F + 4096}")
        e("    s_addc_u32 s7, s15, 0")
        e("    v_mov_b32 v62, 0")
        if tag == "e":
            e("    s_or_b32 s34, s2, s3")
            e("    s_cmp_lg_u32 s34, 0")
            e("    s_cbranch_scc1 L_noinit")
            for q in range(4):
                e(f"    v_mov_b32 v{8+q}, 0")
            e("    v_lshrrev_b32 v12, 2, v2")
            e("    v_lshlrev_b32 v12, 7, v12")
            e("    v_and_b32 v13, 3, v2")
            e("    v_lshl_add_u32 v12, v13, 4, v12")
            for r in range(R):
                if r and r % 2 == 0:
                    e("    v_add_u32 v12, 4096, v12")
                e(f"    global_store_dwordx4 v12, v[8:11], s[14:15] offset:{WS_ACC + (r % 2) * 2048} sc1")
            for r in range(R):
                b = "s[4:5]" if r < 4 else "s[6:7]"
                e(f"    global_store_dwordx4 v3, v[8:11], {b} offset:{(r % 4) * 1024} sc1")
            e("    v_mov_b32 v13, 1")
            e("    s_waitcnt vmcnt(0)")
            e("    s_mov_b64 exec, 1")
            e("    global_store_dword v62, v13, s[12:13] sc1")
            e("    s_mov_b64 exec, -1")
            e("L_noinit:")
        build_A()
        image_addr()
        e("    s_lshl_b32 s34, s3, 10")
        e("    v_add_u32 v60, s34, v60")
        if NX:
            e(f"    s_mul_i32 s34, s3, {NX * 3072}")
            e(f"    s_add_u32 s34, s34, {L_X}")
            e("    v_add_u32 v0, s34, v3")

    def stage_weights():
        e("    s_mov_b32 s34, 0x05040100")
        e("    s_mov_b32 s35, 0x07060302")
        e(f"    ds_write_b128 v6, v[48:51] offset:{L_WD}")
        e("    v_perm_b32 v56, v54, v52, s34")
        e("    v_perm_b32 v57, v54, v52, s35")
        e("    v_perm_b32 v58, v55, v53, s34")
        e("    v_perm_b32 v59, v55, v53, s35")
        e(f"    ds_write_b128 v6, v[56:59] offset:{L_WU}")
        if LAY:
            for m, dst in ((0, 6), (1, 7), (2, 1)):
                e(f"    v_add_u32 v61, {16*m}, v2")
                e("    v_mul_u32_u24 v63, 171, v61")
                e("    v_lshrrev_b32 v63, 12, v63             ; /24")
                e("    v_mul_u32_u24 v63, 24, v63")
                e("    v_sub_u32 v61, v61, v63")
                e(f"    v_lshlrev_b32 v{dst}, 5, v61")
                e(f"    v_add_u32 v{dst}, {L_G}, v{dst}")
        else:
            e("    v_add_u32 v61, 16, v4")
            e("    v_subrev_u32 v63, 24, v61")
            e("    v_min_u32 v61, v61, v63                ; (16+j) mod 24")
            e("    v_lshlrev_b32 v7, 5, v61")
            e(f"    v_add_u32 v7, {L_G}, v7")
            e("    v_lshlrev_b32 v6, 5, v4")
            e(f"    v_add_u32 v6, {L_G}, v6")

    def flag_load(tag):
        e("    s_cmp_lg_u32 s3, 0")
        e(f"    s_cbranch_scc1 L_noflagld{tag}")
        e("    global_load_dword v61, v62, s[12:13] sc1")
        e(f"L_noflagld{tag}:")

    def consume(i, park):
        t, m = divmod(i, 3)
        d = 64 + 12 * (t % 16) + 4 * m
        mfma_for(d, m)
        if t < park:
            e(f"    ds_write_b128 v0, v[{d}:{d+3}] offset:{3072 * t + 1024 * m}")

    ev = sorted([((t + 0.5) / NE, 0, t) for t in range(NE)] + [((t + 0.5) / NO, 1, t) for t in range(NO)])
    if P["MSEP"]:
        ev = [(0, 0, t) for t in range(NE)] + [(0, 1, t) for t in range(NO)]
    bpos = {(par, t): i for i, (_, par, t) in enumerate(ev)}

    def set_off(t, par=None, t_odd=None):
        if P["MAP"] == "M":
            if par is not None:
                e(f"    s_add_u32 s32, s33, {bpos[(par, t)] * bstep}")
            else:
                e("    s_bitcmp1_b32 s2, 0")
                e(f"    s_cselect_b32 s32, {bpos[(1, t if t_odd is None else t_odd)]}, {bpos[(0, t)]}")
                e(f"    s_mul_i32 s32, s32, {bstep}")
                e("    s_add_u32 s32, s32, s33")
            return
        if t_odd is not None:
            e(f"    s_add_u32 s32, s33, {t_odd * step}")
            e(f"    s_add_u32 s35, s37, {(t - NO) * bstep}")
            e("    s_bitcmp1_b32 s2, 0")
            e("    s_cselect_b32 s32, s32, s35")
            return
        if t < NO:
            e(f"    s_add_u32 s32, s33, {(t // GRP) * GRP * step + (t % GRP) * 3072}")
        else:
            e(f"    s_add_u32 s32, s37, {((t - NO) // GRP) * GRP * bstep + ((t - NO) % GRP) * 3072}")

    def load_path(N, W, tag, tail):
        NL = 3 * N
        park = max(0, N - 16)
        Wf = float(W)
        W = min(int(math.ceil(Wf)), NL - 1, 40)
        frac = W - Wf if Wf < W else 0.0
        H = P["HEAD"]
        assert H >= W
        fpos = NL - P["FLAGBACK"] - tail
        assert fpos > H + 1

        def wait_for(k, issued):
            e(f"    s_waitcnt vmcnt({issued - 1 - k + (3 if k < H else 0)})")

        def use(k):
            consume(k, park)
            if k == H:
                stage_weights()
            if k == fpos and not P["TRAIL"]:
                flag_load(tag)

        def do_consume(k, issued):
            wait_for(k, issued)
            use(k)

        nc = 0
        for i in range(H, NL):
            t, m = divmod(i, 3)
            if m == 0:
                set_off(t, 0 if tag == "e" else 1)
            late = None
            if i >= H and i < NL - tail:
                tight = 1 if int(frac * (i + 1)) != int(frac * i) else 0
                last = i - W + tight
                while nc < last:
                    do_consume(nc, i)
                    nc += 1
                if nc == last:
                    wait_for(nc, i)
                    late = nc
                    nc += 1
            if i >= 48 and park:
                assert nc - (1 if late is not None else 0) > i - 48
                e("    s_waitcnt lgkmcnt(0)")
            d = 64 + 12 * (t % 16) + 4 * m
            e(f"    buffer_load_dwordx4 v[{d}:{d+3}], {VOFF}, s[16:19], s32 offen offset:{MOFF*m} {P['LDF']}")
            if late is not None:
                use(late)
        stamp(1)
        extra = 0
        if P["TRAIL"]:
            assert nc > H + 1
            e("    global_load_dword v61, v62, s[12:13] sc1")
            e("    global_load_dword v47, v62, s[6:7] offset:4092 sc1")
            extra = 2
        for k in range(nc, NL):
            do_consume(k, NL + extra)

    assert P["HEAD"] % 3 == 0 and P["HEAD"] <= 3 * NO
    for i in range(P["HEAD"]):
        t, m = divmod(i, 3)
        if m == 0:
            set_off(t)
        d = 64 + 12 * t + 4 * m
        e(f"    buffer_load_dwordx4 v[{d}:{d+3}], {VOFF}, s[16:19], s32 offen offset:{MOFF*m} {P['LDF']}")
    setup_misc("e")
    e("    s_bitcmp1_b32 s2, 0")
    e("    s_cbranch_scc1 L_acc_odd")
    load_path(NE, P["WE"], "e", P["TAILE"])
    e("    s_branch L_acc_done")
    e("L_acc_odd:")
    load_path(NO, P["WO"], "o", P["TAILO"])
    e("L_acc_done:")
    if P["REPL"]:
        assert NE == 16
        for i in range(48):
            t, m = divmod(i, 3)
            if m == 0:
                e("    s_mov_b32 s32, s33" if t == 0 else f"    s_add_u32 s32, s32, {step}")
            e(f"    s_waitcnt vmcnt({P['REPL'] - 1})")
            d = 64 + 4 * i
            e(f"    buffer_load_dwordx4 v[{d}:{d+3}], {VOFF}, s[16:19], s32 offen offset:{MOFF*m} {P['LDF']}")
        e("    s_waitcnt vmcnt(0)")
    stamp(2)
    e("    s_nop 6")
    acc_fold()
    e(f"    ds_write_b128 v60, v[16:19] offset:{L_PART}")
    e("    s_waitcnt lgkmcnt(0)")
    e("    s_barrier                              ; B2")
    e("    s_mov_b64 s[72:73], -1")
    e("    s_cmp_lg_u32 s3, 0")
    e("    s_cbranch_scc1 L_others")
    if P["PRIO"]:
        e("    s_setprio 3")
    stamp(3)
    e("    v_lshlrev_b32 v60, 2, v2               ; lane*4")
    for n in range(4):
        for wp in range(4):
            d = 8 + 8 * n + 2 * wp
            e(f"    ds_read2st64_b32 v[{d}:{d+1}], v60 offset0:{8*wp+n} offset1:{8*wp+4+n}")
    e(f"    s_lshr_b32 s34, s2, {P['REPSH']}")
    e(f"    s_and_b32 s34, s34, {R-1}              ; replica")
    e("    s_lshl_b32 s35, s34, 11")
    e("    v_lshlrev_b32 v48, 7, v5")
    e("    v_lshl_add_u32 v48, v4, 2, v48")
    e("    v_add_u32 v48, s35, v48")
    e("    s_lshl_b32 s35, s34, 10")
    e("    v_add_u32 v49, s35, v60")
    gather_addr()
    e(f"    s_mov_b32 s36, {P['POLLMAX']}")
    e("    s_mov_b32 s8, 0x1fff1fff")
    e("    s_mov_b32 s9, 0x1fff1fff")
    e("    s_mov_b32 s10, 0x0fff0fff")
    e("    s_mov_b32 s11, 0x0fff0fff")
    e(f"    v_mov_b32 v58, {float(256 // R - 1)}")
    if P["TRIG"]:
        assert R == 4
        e("    v_lshrrev_b32 v59, 2, v2")
        e("    v_lshlrev_b32 v59, 7, v59")
        e("    v_and_b32 v60, 3, v2")
        e("    v_lshl_add_u32 v59, v60, 4, v59")
        e("    s_add_u32 s38, s14, 4096")
        e("    s_addc_u32 s39, s15, 0")
        e("    s_mov_b32 s76, 0x88888888")
        e("    s_mov_b32 s77, 0x88888888")
    e("L_flagcheck:")
    e("    s_waitcnt vmcnt(0)")
    e("    v_readfirstlane_b32 s35, v61")
    e("    s_cmp_lg_u32 s35, 0")
    e("    s_cbranch_scc1 L_flagok")
    e("    s_sub_u32 s36, s36, 1")
    e("    s_cbranch_scc1 L_fallback")
    e("    s_sleep 4")
    e("    global_load_dword v61, v62, s[12:13] sc1")
    e("    s_branch L_flagcheck")
    e("L_flagok:")
    stamp(4)
    e("    s_waitcnt lgkmcnt(0)")
    for n in range(4):
        b = 8 + 8 * n
        e(f"    v_pk_add_f32 v[{b}:{b+1}], v[{b}:{b+1}], v[{b+2}:{b+3}]")
        e(f"    v_pk_add_f32 v[{b+4}:{b+5}], v[{b+4}:{b+5}], v[{b+6}:{b+7}]")
    for n in range(4):
        b = 8 + 8 * n
        e(f"    v_pk_add_f32 v[{b}:{b+1}], v[{b}:{b+1}], v[{b+4}:{b+5}]")
    for n in range(4):
        b = 8 + 8 * n
        e(f"    v_add_f32 v{50+n}, v{b}, v{b+1}")
    e("    s_mov_b64 exec, s[8:9]")
    for n in range(4):
        e(f"    global_atomic_add_f32 v{54+n if n < 4 else 0}, v48, v{50+n}, s[14:15] offset:{WS_ACC + 512*n} sc0")
    e("    s_mov_b64 exec, -1")
    if P["TRIG"]:
        e("    global_load_dword v61, v62, s[12:13] offset:128 sc1")
    gather_wd(range(6), 8)
    e(f"    s_mov_b32 s36, {P['POLLMAX']}")
    e("    s_waitcnt vmcnt(0)")
    stamp(5)
    for n in range(4):
        e(f"    v_mov_b32_dpp v{8+n}, v{54+n} row_newbcast:12 row_mask:0xf bank_mask:0xf")
    for n in range(4):
        e(f"    v_add_f32 v{50+n}, v{50+n}, v{54+n}")
    for n in range(4):
        e(f"    v_cmp_eq_f32 s[{64+2*n}:{65+2*n}], v{8+n}, v58")
    for n in range(4):
        e(f"    v_or_b32 v{50+n}, 1, v{50+n}")
    for n in range(4):
        e(f"    s_and_b64 exec, s[{64+2*n}:{65+2*n}], s[10:11]")
        e(f"    s_cbranch_execz L_nopush{n}")
        e(f"    global_atomic_or v49, v{50+n}, s[4:5] offset:{256*n}")
        e(f"L_nopush{n}:")
    e("    s_mov_b64 exec, -1")
    if P["FORCE_FALLBACK"]:
        e("    s_branch L_fallback")
    if P["TRIG"]:
        import struct as _st
        tbits = _st.unpack("<I", _st.pack("<f", float(P["TRIG"] - 1)))[0]
        e("    v_readlane_b32 s35, v54, 12")
        e("    v_mov_b32 v60, 1")
        e(f"    s_cmp_lg_u32 s35, {tbits}")
        e("    s_cbranch_scc1 L_trigcheck")
        e("    s_cmp_lg_u32 s34, 0")
        e("    s_cbranch_scc1 L_trigcheck")
        e("    s_mov_b64 exec, 1")
        e("    global_store_dword v62, v60, s[12:13] offset:128 sc1   ; trigger")
        e("    s_mov_b64 exec, -1")
        e("L_trigwait:")
        e("    global_load_dword v61, v62, s[12:13] offset:128 sc1")
        e("    s_waitcnt vmcnt(0)")
        e("L_trigcheck:")
        e("    v_readfirstlane_b32 s35, v61")
        e("    s_cmp_lg_u32 s35, 0")
        e("    s_cbranch_scc1 L_accpoll0")
        e("    s_sub_u32 s36, s36, 1")
        e("    s_cbranch_scc0 L_trigwait")
        e("    s_branch L_fallback")
        e("L_accpoll0:")
        e(f"    s_mov_b32 s35, {P['KACC'] - 1}")
        e("L_accpoll:")
        for r in range(4):
            b = "s[14:15]" if r < 2 else "s[38:39]"
            e(f"    global_load_dwordx4 v[{8+4*r}:{11+4*r}], v59, {b} offset:{WS_ACC + (r % 2) * 2048} sc1")
        for r in range(1, 4):
            e(f"    s_waitcnt vmcnt({3-r})")
            e(f"    v_pk_add_f32 v[8:9], v[8:9], v[{8+4*r}:{9+4*r}]")
            e(f"    v_pk_add_f32 v[10:11], v[10:11], v[{10+4*r}:{11+4*r}]")
        e("    v_cmp_neq_f32 vcc, 0x43800000, v8")
        e("    s_mov_b32 exec_lo, 0x77777777")
        e("    s_mov_b32 exec_hi, 0x77777777")
        e("    s_and_b64 vcc, vcc, s[76:77]")
        e("    s_cbranch_scc0 L_pollok")
        e("    s_mov_b64 exec, -1")
        e("    s_sub_u32 s35, s35, 1")
        e("    s_cbranch_scc0 L_accpoll")
    e("    s_mov_b32 exec_lo, 0x77777777")
    e("    s_mov_b32 exec_hi, 0x77777777")
    rep_regs = [8, 12, 16, 20, 48, 52, 56, 60]

    def poll_issue(regs):
        for r in range(R):
            d = regs[r]
            b = "s[4:5]" if r < 4 else "s[6:7]"
            e(f"    global_load_dwordx4 v[{d}:{d+3}], v3, {b} offset:{(r % 4) * 1024} sc1")

    def poll_check(regs, later):
        a = regs[0]
        e(f"    s_waitcnt vmcnt({R-1+later})")
        e(f"    v_and_b32 v2, v{a}, v{a+1}")
        e(f"    v_and_b32 v4, v{a+2}, v{a+3}")
        for r in range(1, R):
            e(f"    s_waitcnt vmcnt({R-1-r+later})")
            d = regs[r]
            e(f"    v_bitop3_b32 v2, v2, v{d}, v{d+1} bitop3:0x80")
            e(f"    v_bitop3_b32 v4, v4, v{d+2}, v{d+3} bitop3:0x80")
            e(f"    v_pk_add_f32 v[{a}:{a+1}], v[{a}:{a+1}], v[{d}:{d+1}]")
            e(f"    v_pk_add_f32 v[{a+2}:{a+3}], v[{a+2}:{a+3}], v[{d+2}:{d+3}]")
        e("    v_bitop3_b32 v2, v2, v4, 1 bitop3:0x80")
        e("    v_cmp_ne_u32 vcc, 1, v2")

    if P["PIPE"]:
        assert R <= 4
        A, B = rep_regs[:4], rep_regs[4:]
        poll_issue(A)
        e("L_poll:")
        poll_issue(B)
        poll_check(A, R)
        e("    s_cbranch_vccz L_pollokA")
        poll_issue(A)
        poll_check(B, R)
        e("    s_cbranch_vccz L_pollokB")
        e("    s_sub_u32 s36, s36, 1")
        e("    s_cbranch_scc0 L_poll")
        e("    s_mov_b64 exec, -1")
        e("    s_branch L_fallback")
        e("L_pollokB:")
        e("    s_waitcnt vmcnt(0)")
        for q in range(4):
            e(f"    v_mov_b32 v{8+q}, v{48+q}")
        e("L_pollokA:")
        e("    s_waitcnt vmcnt(0)")
    else:
        e("L_poll:")
        poll_issue(rep_regs)
        poll_check(rep_regs, 0)
        e("    s_cbranch_vccz L_pollok")
        if P["SLEEP"]:
            e(f"    s_sleep {P['SLEEP']}")
        e("    s_sub_u32 s36, s36, 1")
        e("    s_cbranch_scc0 L_poll")
        e("    s_mov_b64 exec, -1")
        e("    s_branch L_fallback")
    e("L_pollok:")
    stamp(6)
    e("L_mlp:")
    stamp(7)
    e("    s_mov_b32 s34, 0x36800000              ; 2^-18")
    e("    s_mov_b32 s35, 0x36800000")
    e("    v_pk_mul_f32 v[8:9], v[8:9], s[34:35]")
    e("    v_pk_mul_f32 v[10:11], v[10:11], s[34:35]")
    e("    v_cvt_pk_bf16_f32 v8, v8, v9")
    e("    v_cvt_pk_bf16_f32 v9, v10, v11")
    e("    v_lshrrev_b32 v10, 1, v3               ; 8q")
    e("    v_lshrrev_b32 v11, 6, v3               ; q>>2")
    e("    v_lshlrev_b32 v11, 3, v11")
    e("    v_sub_u32 v10, v10, v11                ; 24*(q>>2) + 8*(q&3)")
    e(f"    ds_write_b64 v10, v[8:9] offset:{L_S}")
    e("    s_mov_b64 exec, s[72:73]")
    e("    v_lshlrev_b32 v10, 4, v5               ; 16*g4")
    sregs = [12, 16, 20, 48, 52, 56]
    for kk in range(6):
        d = sregs[kk]
        e(f"    ds_read_b128 v[{d}:{d+3}], v10 offset:{L_S + 64*kk}")
    for kk in range(6):
        d = sregs[kk]
        w = 24 + 4 * kk
        e(f"    s_waitcnt lgkmcnt({5-kk})" if not P["DIAG"] else "    s_waitcnt lgkmcnt(0)")
        c = "0" if kk == 0 else "v[8:11]"
        e(f"    v_mfma_f32_16x16x32_bf16 v[8:11], v[{d}:{d+3}], v[{w}:{w+3}], {c}")
    for p in range(6):
        e(f"    ds_read_b128 v[{24+4*p}:{27+4*p}], v3 offset:{L_WU + 1024*p}")
    e("    s_mov_b32 s34, 0xbfb8aa3b              ; -log2(e)")
    e("    s_mov_b32 s35, 0xbfb8aa3b")
    e("    s_nop 1")
    e("    v_cvt_pk_bf16_f32 v8, v8, v8")
    e("    v_lshlrev_b32 v8, 16, v8")
    e("    v_mul_f32 v9, s34, v8")
    e("    v_exp_f32 v9, v9")
    e("    s_nop 0")
    e("    v_add_f32 v9, 1.0, v9")
    e("    v_rcp_f32 v9, v9")
    e("    s_nop 0")
    e("    v_mul_f32 v8, v8, v9                   ; silu")
    e("    s_nop 1")
    e("    v_mov_b32_dpp v9, v8 quad_perm:[1,0,3,2] row_mask:0xf bank_mask:0xf")
    e("    v_cvt_pk_bf16_f32 v8, v8, v9           ; even lanes: {h[j], h[j+1]}")
    e("    s_nop 0")
    for p in range(6):
        e(f"    v_readlane_b32 s{64+p}, v8, {2*p}")
    e("    s_waitcnt lgkmcnt(0)")
    for p in range(6):
        for n in range(4):
            c = "0" if p == 0 else f"v{12+n}"
            e(f"    v_dot2_f32_bf16 v{12+n}, v{24+4*p+n}, s{64+p}, {c}")
    e("    s_nop 2")
    e("    v_cvt_pk_bf16_f32 v8, v12, v13")
    e("    v_cvt_pk_bf16_f32 v9, v14, v15")
    e("    v_lshlrev_b32 v12, 16, v8")
    e("    v_and_b32 v13, 0xffff0000, v8")
    e("    v_lshlrev_b32 v14, 16, v9")
    e("    v_and_b32 v15, 0xffff0000, v9")
    e("    v_pk_mul_f32 v[12:13], v[12:13], s[34:35]")
    e("    v_pk_mul_f32 v[14:15], v[14:15], s[34:35]")
    for n in range(4):
        e(f"    v_exp_f32 v{12+n}, v{12+n}")
    e("    s_nop 0")
    for n in range(4):
        e(f"    v_add_f32 v{12+n}, 1.0, v{12+n}")
    for n in range(4):
        e(f"    v_rcp_f32 v{12+n}, v{12+n}")
    e("    s_nop 0")
    e("    v_cvt_pk_bf16_f32 v8, v12, v13")
    e("    v_cvt_pk_bf16_f32 v9, v14, v15")
    e("    v_lshlrev_b32 v12, 16, v8")
    e("    v_and_b32 v13, 0xffff0000, v8")
    e("    v_lshlrev_b32 v14, 16, v9")
    e("    v_and_b32 v15, 0xffff0000, v9")
    e(f"    ds_write_b128 v3, v[12:15] offset:{L_G}")
    e("    s_waitcnt lgkmcnt(0)")
    stamp(8)
    e("    s_mov_b64 exec, -1")
    if P["PRIO"]:
        e("    s_setprio 0")
    e("L_wait_g:")
    e("    s_waitcnt vmcnt(0)")
    e("    s_barrier                              ; B3")
    if P["MEAS"]:
        e("    s_memrealtime s[44:45]")
    e("    ds_read_b128 v[24:27], v6")
    e("    ds_read_b128 v[28:31], v6 offset:16")
    e("    ds_read_b128 v[32:35], v7")
    e("    ds_read_b128 v[36:39], v7 offset:16")
    if LAY:
        e("    ds_read_b128 v[40:43], v1")
        e("    ds_read_b128 v[44:47], v1 offset:16")
    else:
        e("    ds_read_b128 v[40:43], v6 offset:256")
        e("    ds_read_b128 v[44:47], v6 offset:272")
    e("    s_mov_b32 s34, 0xffff0000")
    cnt = [0]

    def store_unit(slot):
        for m in range(3):
            d = 64 + 12 * slot + 4 * m
            g = 24 + 8 * m
            tb = 8 + 8 * (cnt[0] % 2)
            cnt[0] += 1
            for q in range(4):
                e(f"    v_lshlrev_b32 v{tb+2*q}, 16, v{d+q}")
                e(f"    v_and_b32 v{tb+2*q+1}, s34, v{d+q}")
            for q in range(4):
                e(f"    v_pk_mul_f32 v[{tb+2*q}:{tb+2*q+1}], v[{tb+2*q}:{tb+2*q+1}], v[{g+2*q}:{g+2*q+1}]")
            for q in range(4):
                e(f"    v_cvt_pk_bf16_f32 v{d+q}, v{tb+2*q}, v{tb+2*q+1}")
            if P["WS"]:
                e(f"    s_waitcnt vmcnt({P['WS'] - 1})")
            fl = P["STF"]
            if cnt[0] > 3 * NE - P["PL"]:
                fl = P["PLF"]
            e(f"    buffer_store_dwordx4 v[{d}:{d+3}], {VOFF}, s[20:23], s32 offen offset:{MOFF*m} {fl}")

    e("    s_waitcnt lgkmcnt(0)")
    assert GRP == 1 or NX == 0
    for t in range(NX, NO):
        set_off(t)
        store_unit(t)
    if NE > NO:
        for x in range(NX):
            set_off(16 + x, None, x)
            store_unit(x)
        e("    s_bitcmp1_b32 s2, 0")
        e("    s_cbranch_scc1 L_st_done")
        for x in range(NX):
            for m in range(3):
                d = 64 + 12 * x + 4 * m
                e(f"    ds_read_b128 v[{d}:{d+3}], v0 offset:{3072 * x + 1024 * m}")
        for t in range(NO, 16):
            set_off(t, 0)
            store_unit(t)
        e("    s_waitcnt lgkmcnt(0)")
        for t in range(NX):
            set_off(t, 0)
            store_unit(t)
        e("L_st_done:")
    if P["REPS"]:
        assert NE == 16
        for i in range(48):
            t, m = divmod(i, 3)
            if m == 0:
                e("    s_mov_b32 s32, s33" if t == 0 else f"    s_add_u32 s32, s32, {step}")
            d = 64 + 4 * i
            e(f"    buffer_store_dwordx4 v[{d}:{d+3}], {VOFF}, s[20:23], s32 offen offset:{MOFF*m} {P['STF']}")
    if P["DIAG"]:
        stamp(9)
        e("    s_waitcnt vmcnt(0)")
        stamp(10)
        e("    s_lshl_b32 s34, s2, 3")
        e("    s_add_u32 s34, s34, s3")
        e("    s_lshl_b32 s34, s34, 6")
        e(f"    s_add_u32 s34, s34, {WS_DIAG}")
        e("    v_mov_b32 v8, s34")
        e("    s_waitcnt lgkmcnt(0)")
        e("    s_mov_b64 exec, 1")
        for k in range(12):
            e(f"    v_mov_b32 v{12+k}, s{40+2*k}")
        e("    s_getreg_b32 s34, hwreg(HW_REG_XCC_ID)")
        e("    v_mov_b32 v24, s34")
        e("    v_mov_b32 v25, s36")
        e("    global_store_dwordx4 v8, v[12:15], s[14:15]")
        e("    global_store_dwordx4 v8, v[16:19], s[14:15] offset:16")
        e("    global_store_dwordx4 v8, v[20:23], s[14:15] offset:32")
        e("    global_store_dwordx2 v8, v[24:25], s[14:15] offset:48")
    if P["MEAS"]:
        e("    s_cmp_lg_u32 s3, 0")
        e("    s_cbranch_scc1 L_end")
        e("    v_mov_b32 v57, 192")
        e("    global_load_dword v56, v57, s[12:13] sc1")
        e("    s_waitcnt vmcnt(0)")
        e("    s_memrealtime s[46:47]")
        e("    v_readfirstlane_b32 s42, v56")
        e("    s_waitcnt lgkmcnt(0)")
        e("    s_not_b32 s42, s42")
        if P["MEAS"] == 1:
            e("    s_sub_u32 s43, s46, s42")
        elif P["MEAS"] == 2:
            e("    s_sub_u32 s43, s44, s42")
        elif P["MEAS"] == 3:
            e("    s_sub_u32 s43, s40, s42")
            e("    s_mul_i32 s43, s43, 10")
        elif P["MEAS"] == 5:
            e("    s_sub_u32 s43, s40, s50")
            e("    s_mul_i32 s43, s43, 40")
        else:
            e("    s_mov_b32 s43, 0")
        e("    s_min_u32 s43, s43, 100000")
        e("L_mspin:")
        e("    s_sleep 1")
        e("    s_memrealtime s[48:49]")
        e("    s_waitcnt lgkmcnt(0)")
        e("    s_sub_u32 s48, s48, s46")
        e("    s_cmp_lt_u32 s48, s43")
        e("    s_cbranch_scc1 L_mspin")
    e("L_end:")
    e("    s_endpgm")
    e("L_others:")
    if P["DRYW"] >= 0:
        e(f"    s_cmp_lg_u32 s3, {P['DRYW']}")
        e("    s_cbranch_scc1 L_wait_g")
    if P["PFC"]:
        e("    s_getpc_b64 s[74:75]")
        e("L_pc:")
        e("    s_sub_u32 s74, s74, L_pc-L_wait_g")
        e("    s_subb_u32 s75, s75, 0")
        e("    v_lshlrev_b32 v8, 3, v3                ; lane*128")
        e("    v_min_u32 v8, L_end-L_wait_g, v8")
        e("    global_load_dword v63, v8, s[74:75]")
    if P["DRY"]:
        e("    s_mov_b64 s[72:73], 0")
        e("    s_mov_b64 exec, 0")
        e("    s_branch L_mlp")
    else:
        e("    s_branch L_wait_g")
    e("L_fallback:")
    e("    s_waitcnt vmcnt(0) lgkmcnt(0)")
    e("    v_bfe_u32 v4, v3, 4, 4                 ; j again")
    build_A()
    image_addr()
    e("    s_mov_b32 s36, 0")
    e("L_fb_loop:")
    for m in range(3):
        e(f"    buffer_load_dwordx4 v[{48+4*m}:{51+4*m}], {VOFF}, s[16:19], s36 offen offset:{MOFF*m}")
    e("    s_waitcnt vmcnt(0)")
    for m in range(3):
        mfma_for(48 + 4 * m, m)
    e("    s_add_u32 s36, s36, 3072")
    e(f"    s_cmp_lt_u32 s36, {XBYTES}")
    e("    s_cbranch_scc1 L_fb_loop")
    e("    s_nop 7")
    acc_fold()
    e(f"    ds_write_b128 v60, v[16:19] offset:{L_PART}")
    gather_addr()
    gather_wd(range(6), 8)
    e(f"    ds_read_b128 v[8:11], v3 offset:{L_PART}")
    e("    s_waitcnt lgkmcnt(0)")
    e("    s_mov_b32 exec_lo, 0x77777777")
    e("    s_mov_b32 exec_hi, 0x77777777")
    e("    s_branch L_mlp")
    e('.section .rodata,"a"')
    e(".p2align 6")
    e(f".amdhsa_kernel {NAME}_kernel")
    e("  .amdhsa_next_free_vgpr 256")
    e("  .amdhsa_next_free_sgpr 80")
    e("  .amdhsa_accum_offset 256")
    e("  .amdhsa_group_segment_fixed_size 0")
    e("  .amdhsa_kernarg_size 48")
    e("  .amdhsa_user_sgpr_count 2")
    e("  .amdhsa_user_sgpr_kernarg_segment_ptr 1")
    e("  .amdhsa_system_sgpr_workgroup_id_x 1")
    e("  .amdhsa_float_denorm_mode_32 3")
    e("  .amdhsa_float_denorm_mode_16_64 3")
    e(".end_amdhsa_kernel")
    return "\n".join(o) + "\n"


def parse_args(argv):
    out = None
    kw = {}
    for a in argv:
        if "=" in a:
            k, v = a.split("=", 1)
            try:
                v = int(v)
            except ValueError:
                v = v.replace("+", " ")
            kw[k] = v
        else:
            out = a
    return out, kw


if __name__ == "__main__":
    out, kw = parse_args(sys.argv[1:])
    txt = gen(**kw)
    if out:
        open(out, "w").write(txt)
    else:
        sys.stdout.write(txt)
```

```python
import sys
import math

NAME = "standalone__channel_attn_se__vision"
XBYTES = 512 * 512 * 192 * 2

DEFAULTS = dict(
    LDF="nt",
    STF="sc0 sc1",
    DIAG=0,
    FLAGBACK=14,
    SLEEP=0,
    POLLMAX=8192,
    FORCE_FALLBACK=0,
    NE=18,
    WE=3,
    WO="2.5",
    REPSH=3,
    R=4,
    SPRE=0,
    LAY=0,
    MSEP=0,
    MAP="A",
    PL=0,
    PLF="",
    PF=0,
    MEAS=0,
    TRIG=0,
    KACC=3,
    TRAIL=1,
    HEAD=6,
    GRP=1,
    PRIO=1,
    DRYW=2,
    WS=0,
    PIPE=0,
    REPL=0,
    REPS=0,
    PRE=0,
    DRY=1,
    PFC=1,
    TAILE=6,
    TAILO=4,
    TR=1,
)

L_PART = 0x0000
L_S = 0x2000
L_G = 0x2400
L_WD = 0x3000
L_WU = 0x5000
L_X = 0x7000

WS_ACC = 0
WS_F = 16384
WS_DIAG = 65536


HEADER = """
;
"""


def gen(**kw):
    P = dict(DEFAULTS)
    P.update(kw)
    o = []
    e = o.append
    R = P["R"]
    assert R in (1, 2, 4, 8)
    NE = P["NE"]
    NO = 32 - NE
    NX = NE - 16
    assert 0 <= NX <= NO
    LDS_BYTES = L_X + 8 * NX * 3072
    step = 2048 * 3072
    bstep = 1024 * 3072
    if P["MAP"] == "B":
        step = bstep = 8 * 3072
    elif P["MAP"] == "X":
        step = 256 * 3072
        bstep = 128 * 3072

    def stamp(k):
        if P["DIAG"]:
            e(f"    s_memrealtime s[{40+2*k}:{41+2*k}]")

    LAY = P["LAY"]
    MOFF = 1024 if LAY else 256
    VOFF = "v3" if LAY else "v1"

    def build_A():
        e("    v_and_b32 v16, 1, v4")
        e("    v_cmp_eq_u32 vcc, 1, v16")
        e("    v_mov_b32 v17, 0x3f80")
        e("    v_mov_b32 v18, 0x3f800000")
        e("    v_cndmask_b32 v17, v17, v18, vcc")
        if LAY:
            e("    v_lshrrev_b32 v18, 3, v4")
            e("    v_add_u32 v19, 3, v5")
            e("    v_sub_u32 v19, v19, v18                ; g4 - half + 3  (2..6)")
            e("    v_mul_u32_u24 v20, 43, v19")
            e("    v_lshrrev_b32 v20, 7, v20")
            e("    v_mul_u32_u24 v20, 3, v20")
            e("    v_sub_u32 v19, v19, v20")
            e("    v_bfe_u32 v16, v4, 1, 2                ; (j>>1)&3")
            e("    v_lshl_add_u32 v16, v19, 2, v16")
            for q in range(12):
                e(f"    v_cmp_eq_u32 vcc, {q}, v16")
                e("    s_nop 1")
                e(f"    v_cndmask_b32 v{32+q}, 0, v17, vcc")
        else:
            e("    v_lshrrev_b32 v16, 1, v4               ; j>>1")
            for q in range(8):
                e(f"    v_cmp_eq_u32 vcc, {q}, v16")
                e("    s_nop 1")
                e(f"    v_cndmask_b32 v{8+q}, 0, v17, vcc")
        for q in range(12):
            e(f"    v_mov_b32 v{16+q}, 0")
        e("    v_mov_b32 v28, 0x3e000000")

    def image_addr():
        e("    v_lshrrev_b32 v60, 1, v5")
        e("    v_lshlrev_b32 v60, 5, v60")
        e("    v_lshl_add_u32 v60, v4, 1, v60")
        e("    v_and_b32 v61, 1, v5")
        e("    v_add_u32 v60, v60, v61                ; slot = 32*(g4>>1) + 2j + (g4&1)")
        e("    v_mul_u32_u24 v61, 43, v60")
        e("    v_lshrrev_b32 v61, 7, v61              ; slot/3")
        e("    v_add_u32 v61, v60, v61")
        e("    v_lshlrev_b32 v63, 2, v60")
        e("    v_subrev_u32 v63, 189, v63")
        e("    v_cmp_gt_u32 vcc, 48, v60")
        e("    s_nop 1")
        e("    v_cndmask_b32 v60, v63, v61, vcc")
        e("    v_lshlrev_b32 v60, 4, v60")

    def mfma_for(d, m):
        if LAY:
            for acc, c in ((16, 0), (24, 1), (20, 2)):
                a = 32 + 4 * ((c - m) % 3)
                e(f"    v_mfma_f32_16x16x32_bf16 v[{acc}:{acc+3}], v[{a}:{a+3}], v[{d}:{d+3}], v[{acc}:{acc+3}]")
            return
        if m == 0:
            e(f"    v_mfma_f32_16x16x32_bf16 v[16:19], v[8:11], v[{d}:{d+3}], v[16:19]")
        elif m == 1:
            e(f"    v_mfma_f32_16x16x32_bf16 v[16:19], v[12:15], v[{d}:{d+3}], v[16:19]")
            e(f"    v_mfma_f32_16x16x32_bf16 v[24:27], v[8:11], v[{d}:{d+3}], v[24:27]")
        else:
            e(f"    v_mfma_f32_16x16x32_bf16 v[24:27], v[12:15], v[{d}:{d+3}], v[24:27]")
            e(f"    v_mfma_f32_16x16x32_bf16 v[20:23], v[8:11], v[{d}:{d+3}], v[20:23]")

    def acc_fold():
        for r in range(4):
            e(f"    v_add_f32_dpp v{16+r}, v{24+r}, v{16+r} row_ror:8 row_mask:0xf bank_mask:0x3")
        for r in range(4):
            e(f"    v_add_f32_dpp v{16+r}, v{20+r}, v{16+r} row_ror:8 row_mask:0x3 bank_mask:0xc")
        e("    v_mov_b32_dpp v16, v28 quad_perm:[0,1,2,3] row_mask:0xc bank_mask:0xc")

    def gather_addr():
        if P["TR"]:
            e("    v_mul_u32_u24 v63, 192, v5")
            e("    v_lshrrev_b32 v59, 2, v4")
            e("    v_mad_u32_u24 v63, v59, 24, v63")
            e("    v_and_b32 v59, 3, v4")
            e("    v_lshl_add_u32 v63, v59, 3, v63")
        else:
            e("    v_mul_u32_u24 v63, 192, v5")
            e("    v_lshl_add_u32 v63, v4, 1, v63")

    def gather_wd(kks, tmp):
        if P["TR"]:
            for kk in kks:
                for h in range(2):
                    d = 24 + 4 * kk + 2 * h
                    e(f"    ds_read_b64_tr_b16 v[{d}:{d+1}], v63 offset:{L_WD + 768 * kk + 96 * h}")
            return
        for kk in kks:
            for q in range(4):
                off = L_WD + 768 * kk + 48 * q
                e(f"    ds_read_u16 v{tmp+2*q}, v63 offset:{off}")
                e(f"    ds_read_u16 v{tmp+1+2*q}, v63 offset:{off+24}")
            e("    s_waitcnt lgkmcnt(0)")
            for q in range(4):
                e(f"    v_lshl_or_b32 v{24+4*kk+q}, v{tmp+1+2*q}, 16, v{tmp+2*q}")

    if P["DIAG"] or P["MEAS"]:
        e(f"; diagnostic build; params {P}")
    for line in HEADER.strip("\n").split("\n"):
        e(line)
    e(f"; @launch grid=(256,1,1) block=(512,1,1) lds={LDS_BYTES}")
    e('.amdgcn_target "amdgcn-amd-amdhsa--gfx950"')
    e(".text")
    e(f".globl {NAME}_kernel")
    e(".p2align 8")
    e(f".type {NAME}_kernel,@function")
    e(f"{NAME}_kernel:")
    if P["MEAS"] >= 5:
        e("    s_memrealtime s[50:51]")
    e("    s_load_dwordx8 s[4:11], s[0:1], 0")
    e("    s_load_dwordx4 s[12:15], s[0:1], 32")
    stamp(0)
    e("    s_cmp_ge_u32 s2, 256")
    e("    s_cbranch_scc1 L_end")
    e("    v_and_b32 v2, 63, v0                   ; lane")
    e("    v_lshrrev_b32 v3, 6, v0")
    e("    v_and_b32 v4, 15, v0                   ; j")
    e("    v_bfe_u32 v5, v0, 4, 2                 ; g4")
    if not LAY:
        e("    v_mul_u32_u24 v1, 768, v5")
        e("    v_lshl_add_u32 v1, v4, 4, v1           ; 768*g4 + 16*j")
    e("    v_readfirstlane_b32 s3, v3")
    e("    v_lshlrev_b32 v6, 4, v0")
    e("    v_mul_u32_u24 v7, 768, v3")
    e("    v_lshl_add_u32 v7, v2, 3, v7")
    e("    v_lshlrev_b32 v3, 4, v2                ; lane*16")
    GRP = P["GRP"]
    assert NO % GRP == 0 and (NE - NO) % GRP == 0
    if P["MAP"] == "A":
        e("    s_lshl_b32 s33, s2, 3")
        e("    s_add_u32 s33, s33, s3")
        e(f"    s_mul_i32 s33, s33, {3072 * GRP}")
        e("    s_lshr_b32 s37, s2, 1")
        e("    s_lshl_b32 s37, s37, 3")
        e("    s_add_u32 s37, s37, s3")
        e(f"    s_mul_i32 s37, s37, {3072 * GRP}")
        e(f"    s_add_u32 s37, s37, {NO * step}")
    elif P["MAP"] == "M":
        e("    s_lshr_b32 s33, s2, 1")
        e("    s_lshl_b32 s33, s33, 3")
        e("    s_add_u32 s33, s33, s3")
        e("    s_mul_i32 s33, s33, 3072")
    elif P["MAP"] == "B":
        e("    s_lshr_b32 s33, s2, 1")
        e("    s_lshl_b32 s33, s33, 8")
        e("    s_and_b32 s34, s2, 1")
        e(f"    s_mul_i32 s34, s34, {8 * NE}")
        e("    s_add_u32 s33, s33, s34")
        e("    s_add_u32 s33, s33, s3")
        e("    s_mul_i32 s33, s33, 3072")
        e(f"    s_add_u32 s37, s33, {NO * step}")
    elif P["MAP"] == "X":
        e("    s_lshr_b32 s34, s2, 5")
        e(f"    s_mul_i32 s34, s34, {XBYTES // 8}")
        e("    s_and_b32 s35, s2, 31")
        e("    s_lshl_b32 s33, s35, 3")
        e("    s_add_u32 s33, s33, s3")
        e("    s_mul_i32 s33, s33, 3072")
        e("    s_add_u32 s33, s33, s34")
        e("    s_lshr_b32 s37, s35, 1")
        e("    s_lshl_b32 s37, s37, 3")
        e("    s_add_u32 s37, s37, s3")
        e("    s_mul_i32 s37, s37, 3072")
        e("    s_add_u32 s37, s37, s34")
        e(f"    s_add_u32 s37, s37, {NO * step}")
    e("    s_mov_b32 s18, %d" % XBYTES)
    e("    s_mov_b32 s19, 0x00020000")
    e("    s_mov_b32 s22, %d" % XBYTES)
    e("    s_mov_b32 s23, 0x00020000")
    e("    s_mov_b32 s26, 4608")
    e("    s_mov_b32 s27, 0x00020000")
    e("    s_mov_b32 s30, 4608")
    e("    s_mov_b32 s31, 0x00020000")
    e("    s_waitcnt lgkmcnt(0)")
    e("    s_mov_b32 s16, s4")
    e("    s_mov_b32 s17, s5")
    e("    s_mov_b32 s24, s6")
    e("    s_mov_b32 s25, s7")
    e("    s_mov_b32 s28, s8")
    e("    s_mov_b32 s29, s9")
    e("    s_mov_b32 s20, s10")
    e("    s_mov_b32 s21, s11")
    stamp(11)
    if P["MEAS"]:
        e("    s_memrealtime s[40:41]")
        e("    s_waitcnt lgkmcnt(0)")
        e("    s_cmp_lg_u32 s3, 0")
        e("    s_cbranch_scc1 L_ms0")
        e("    s_not_b32 s42, s40")
        e("    v_mov_b32 v56, s42")
        e("    v_mov_b32 v57, 192")
        e("    s_mov_b64 exec, 1")
        e("    global_atomic_umax v57, v56, s[12:13]")
        e("    s_mov_b64 exec, -1")
        e("L_ms0:")
    if P["PRE"]:
        e("    s_cmp_lg_u32 s3, 7")
        e("    s_cbranch_scc1 L_nopre")
        e("    v_lshlrev_b32 v56, 21, v2")
        if P["PRE"] & 1:
            e("    buffer_load_dword v57, v56, s[16:19], 0 offen nt")
        if P["PRE"] & 2:
            e("    buffer_load_dword v58, v56, s[20:23], 0 offen nt")
        e("L_nopre:")

    def setup_misc(tag):
        e("    buffer_load_dwordx4 v[48:51], v6, s[24:27], 0 offen")
        e("    buffer_load_dwordx2 v[52:53], v7, s[28:31], 0 offen")
        e("    buffer_load_dwordx2 v[54:55], v7, s[28:31], 0 offen offset:384")
        e(f"    s_add_u32 s4, s14, {WS_F}")
        e("    s_addc_u32 s5, s15, 0")
        e(f"    s_add_u32 s6, s14, {WS_F + 4096}")
        e("    s_addc_u32 s7, s15, 0")
        e("    v_mov_b32 v62, 0")
        if tag == "e":
            e("    s_or_b32 s34, s2, s3")
            e("    s_cmp_lg_u32 s34, 0")
            e("    s_cbranch_scc1 L_noinit")
            for q in range(4):
                e(f"    v_mov_b32 v{8+q}, 0")
            e("    v_lshrrev_b32 v12, 2, v2")
            e("    v_lshlrev_b32 v12, 7, v12")
            e("    v_and_b32 v13, 3, v2")
            e("    v_lshl_add_u32 v12, v13, 4, v12")
            for r in range(R):
                if r and r % 2 == 0:
                    e("    v_add_u32 v12, 4096, v12")
                e(f"    global_store_dwordx4 v12, v[8:11], s[14:15] offset:{WS_ACC + (r % 2) * 2048} sc1")
            for r in range(R):
                b = "s[4:5]" if r < 4 else "s[6:7]"
                e(f"    global_store_dwordx4 v3, v[8:11], {b} offset:{(r % 4) * 1024} sc1")
            e("    v_mov_b32 v13, 1")
            e("    s_waitcnt vmcnt(0)")
            e("    s_mov_b64 exec, 1")
            e("    global_store_dword v62, v13, s[12:13] sc1")
            e("    s_mov_b64 exec, -1")
            e("L_noinit:")
        build_A()
        image_addr()
        e("    s_lshl_b32 s34, s3, 10")
        e("    v_add_u32 v60, s34, v60")
        if NX:
            e(f"    s_mul_i32 s34, s3, {NX * 3072}")
            e(f"    s_add_u32 s34, s34, {L_X}")
            e("    v_add_u32 v0, s34, v3")

    def stage_weights():
        e("    s_mov_b32 s34, 0x05040100")
        e("    s_mov_b32 s35, 0x07060302")
        e(f"    ds_write_b128 v6, v[48:51] offset:{L_WD}")
        e("    v_perm_b32 v56, v54, v52, s34")
        e("    v_perm_b32 v57, v54, v52, s35")
        e("    v_perm_b32 v58, v55, v53, s34")
        e("    v_perm_b32 v59, v55, v53, s35")
        e(f"    ds_write_b128 v6, v[56:59] offset:{L_WU}")
        if LAY:
            for m, dst in ((0, 6), (1, 7), (2, 1)):
                e(f"    v_add_u32 v61, {16*m}, v2")
                e("    v_mul_u32_u24 v63, 171, v61")
                e("    v_lshrrev_b32 v63, 12, v63             ; /24")
                e("    v_mul_u32_u24 v63, 24, v63")
                e("    v_sub_u32 v61, v61, v63")
                e(f"    v_lshlrev_b32 v{dst}, 5, v61")
                e(f"    v_add_u32 v{dst}, {L_G}, v{dst}")
        else:
            e("    v_add_u32 v61, 16, v4")
            e("    v_subrev_u32 v63, 24, v61")
            e("    v_min_u32 v61, v61, v63                ; (16+j) mod 24")
            e("    v_lshlrev_b32 v7, 5, v61")
            e(f"    v_add_u32 v7, {L_G}, v7")
            e("    v_lshlrev_b32 v6, 5, v4")
            e(f"    v_add_u32 v6, {L_G}, v6")

    def flag_load(tag):
        e("    s_cmp_lg_u32 s3, 0")
        e(f"    s_cbranch_scc1 L_noflagld{tag}")
        e("    global_load_dword v61, v62, s[12:13] sc1")
        e(f"L_noflagld{tag}:")

    def consume(i, park):
        t, m = divmod(i, 3)
        d = 64 + 12 * (t % 16) + 4 * m
        mfma_for(d, m)
        if t < park:
            e(f"    ds_write_b128 v0, v[{d}:{d+3}] offset:{3072 * t + 1024 * m}")

    ev = sorted([((t + 0.5) / NE, 0, t) for t in range(NE)] + [((t + 0.5) / NO, 1, t) for t in range(NO)])
    if P["MSEP"]:
        ev = [(0, 0, t) for t in range(NE)] + [(0, 1, t) for t in range(NO)]
    bpos = {(par, t): i for i, (_, par, t) in enumerate(ev)}

    def set_off(t, par=None, t_odd=None):
        if P["MAP"] == "M":
            if par is not None:
                e(f"    s_add_u32 s32, s33, {bpos[(par, t)] * bstep}")
            else:
                e("    s_bitcmp1_b32 s2, 0")
                e(f"    s_cselect_b32 s32, {bpos[(1, t if t_odd is None else t_odd)]}, {bpos[(0, t)]}")
                e(f"    s_mul_i32 s32, s32, {bstep}")
                e("    s_add_u32 s32, s32, s33")
            return
        if t_odd is not None:
            e(f"    s_add_u32 s32, s33, {t_odd * step}")
            e(f"    s_add_u32 s35, s37, {(t - NO) * bstep}")
            e("    s_bitcmp1_b32 s2, 0")
            e("    s_cselect_b32 s32, s32, s35")
            return
        if t < NO:
            e(f"    s_add_u32 s32, s33, {(t // GRP) * GRP * step + (t % GRP) * 3072}")
        else:
            e(f"    s_add_u32 s32, s37, {((t - NO) // GRP) * GRP * bstep + ((t - NO) % GRP) * 3072}")

    def load_path(N, W, tag, tail):
        NL = 3 * N
        park = max(0, N - 16)
        Wf = float(W)
        W = min(int(math.ceil(Wf)), NL - 1, 40)
        frac = W - Wf if Wf < W else 0.0
        H = P["HEAD"]
        assert H >= W
        fpos = NL - P["FLAGBACK"] - tail
        assert fpos > H + 1

        def wait_for(k, issued):
            e(f"    s_waitcnt vmcnt({issued - 1 - k + (3 if k < H else 0)})")

        def use(k):
            consume(k, park)
            if k == H:
                stage_weights()
            if k == fpos and not P["TRAIL"]:
                flag_load(tag)

        def do_consume(k, issued):
            wait_for(k, issued)
            use(k)

        nc = 0
        for i in range(H, NL):
            t, m = divmod(i, 3)
            if m == 0:
                set_off(t, 0 if tag == "e" else 1)
            late = None
            if i >= H and i < NL - tail:
                tight = 1 if int(frac * (i + 1)) != int(frac * i) else 0
                last = i - W + tight
                while nc < last:
                    do_consume(nc, i)
                    nc += 1
                if nc == last:
                    wait_for(nc, i)
                    late = nc
                    nc += 1
            if i >= 48 and park:
                assert nc - (1 if late is not None else 0) > i - 48
                e("    s_waitcnt lgkmcnt(0)")
            d = 64 + 12 * (t % 16) + 4 * m
            e(f"    buffer_load_dwordx4 v[{d}:{d+3}], {VOFF}, s[16:19], s32 offen offset:{MOFF*m} {P['LDF']}")
            if late is not None:
                use(late)
        stamp(1)
        extra = 0
        if P["TRAIL"]:
            assert nc > H + 1
            e("    global_load_dword v61, v62, s[12:13] sc1")
            e("    global_load_dword v47, v62, s[6:7] offset:4092 sc1")
            extra = 2
        for k in range(nc, NL):
            do_consume(k, NL + extra)

    assert P["HEAD"] % 3 == 0 and P["HEAD"] <= 3 * NO
    for i in range(P["HEAD"]):
        t, m = divmod(i, 3)
        if m == 0:
            set_off(t)
        d = 64 + 12 * t + 4 * m
        e(f"    buffer_load_dwordx4 v[{d}:{d+3}], {VOFF}, s[16:19], s32 offen offset:{MOFF*m} {P['LDF']}")
    if P["SPRE"]:
        e("    s_and_b32 s34, s2, 0xf8")
        e("    s_add_u32 s34, s34, s3")
        if P["SPRE"] & 1:
            e("    s_cmp_ge_u32 s34, 48")
            e("    s_cbranch_scc1 L_sp1")
            e("    s_lshl_b32 s35, s34, 21")
            e("    s_load_dword s78, s[16:17], s35")
            e("L_sp1:")
        if P["SPRE"] & 2:
            e("    s_sub_u32 s34, s34, 64")
            e("    s_cmp_ge_u32 s34, 48")
            e("    s_cbranch_scc1 L_sp2")
            e("    s_lshl_b32 s35, s34, 21")
            e("    s_load_dword s79, s[20:21], s35")
            e("L_sp2:")
    setup_misc("e")
    e("    s_bitcmp1_b32 s2, 0")
    e("    s_cbranch_scc1 L_acc_odd")
    load_path(NE, P["WE"], "e", P["TAILE"])
    e("    s_branch L_acc_done")
    e("L_acc_odd:")
    load_path(NO, P["WO"], "o", P["TAILO"])
    e("L_acc_done:")
    if P["REPL"]:
        assert NE == 16
        for i in range(48):
            t, m = divmod(i, 3)
            if m == 0:
                e("    s_mov_b32 s32, s33" if t == 0 else f"    s_add_u32 s32, s32, {step}")
            e(f"    s_waitcnt vmcnt({P['REPL'] - 1})")
            d = 64 + 4 * i
            e(f"    buffer_load_dwordx4 v[{d}:{d+3}], {VOFF}, s[16:19], s32 offen offset:{MOFF*m} {P['LDF']}")
        e("    s_waitcnt vmcnt(0)")
    stamp(2)
    e("    s_nop 6")
    acc_fold()
    e(f"    ds_write_b128 v60, v[16:19] offset:{L_PART}")
    e("    s_waitcnt lgkmcnt(0)")
    e("    s_barrier                              ; B2")
    e("    s_mov_b64 s[72:73], -1")
    e("    s_cmp_lg_u32 s3, 0")
    e("    s_cbranch_scc1 L_others")
    if P["PRIO"]:
        e("    s_setprio 3")
    stamp(3)
    e("    v_lshlrev_b32 v60, 2, v2               ; lane*4")
    for n in range(4):
        for wp in range(4):
            d = 8 + 8 * n + 2 * wp
            e(f"    ds_read2st64_b32 v[{d}:{d+1}], v60 offset0:{8*wp+n} offset1:{8*wp+4+n}")
    e(f"    s_lshr_b32 s34, s2, {P['REPSH']}")
    e(f"    s_and_b32 s34, s34, {R-1}              ; replica")
    e("    s_lshl_b32 s35, s34, 11")
    e("    v_lshlrev_b32 v48, 7, v5")
    e("    v_lshl_add_u32 v48, v4, 2, v48")
    e("    v_add_u32 v48, s35, v48")
    e("    s_lshl_b32 s35, s34, 10")
    e("    v_add_u32 v49, s35, v60")
    gather_addr()
    e(f"    s_mov_b32 s36, {P['POLLMAX']}")
    e("    s_mov_b32 s8, 0x1fff1fff")
    e("    s_mov_b32 s9, 0x1fff1fff")
    e("    s_mov_b32 s10, 0x0fff0fff")
    e("    s_mov_b32 s11, 0x0fff0fff")
    e(f"    v_mov_b32 v58, {float(256 // R - 1)}")
    if P["TRIG"]:
        assert R == 4
        e("    v_lshrrev_b32 v59, 2, v2")
        e("    v_lshlrev_b32 v59, 7, v59")
        e("    v_and_b32 v60, 3, v2")
        e("    v_lshl_add_u32 v59, v60, 4, v59")
        e("    s_add_u32 s38, s14, 4096")
        e("    s_addc_u32 s39, s15, 0")
        e("    s_mov_b32 s76, 0x88888888")
        e("    s_mov_b32 s77, 0x88888888")
    e("L_flagcheck:")
    e("    s_waitcnt vmcnt(0)")
    e("    v_readfirstlane_b32 s35, v61")
    e("    s_cmp_lg_u32 s35, 0")
    e("    s_cbranch_scc1 L_flagok")
    e("    s_sub_u32 s36, s36, 1")
    e("    s_cbranch_scc1 L_fallback")
    e("    s_sleep 4")
    e("    global_load_dword v61, v62, s[12:13] sc1")
    e("    s_branch L_flagcheck")
    e("L_flagok:")
    stamp(4)
    e("    s_waitcnt lgkmcnt(0)")
    for n in range(4):
        b = 8 + 8 * n
        e(f"    v_pk_add_f32 v[{b}:{b+1}], v[{b}:{b+1}], v[{b+2}:{b+3}]")
        e(f"    v_pk_add_f32 v[{b+4}:{b+5}], v[{b+4}:{b+5}], v[{b+6}:{b+7}]")
    for n in range(4):
        b = 8 + 8 * n
        e(f"    v_pk_add_f32 v[{b}:{b+1}], v[{b}:{b+1}], v[{b+4}:{b+5}]")
    for n in range(4):
        b = 8 + 8 * n
        e(f"    v_add_f32 v{50+n}, v{b}, v{b+1}")
    e("    s_mov_b64 exec, s[8:9]")
    for n in range(4):
        e(f"    global_atomic_add_f32 v{54+n if n < 4 else 0}, v48, v{50+n}, s[14:15] offset:{WS_ACC + 512*n} sc0")
    e("    s_mov_b64 exec, -1")
    if P["TRIG"]:
        e("    global_load_dword v61, v62, s[12:13] offset:128 sc1")
    gather_wd(range(6), 8)
    e(f"    s_mov_b32 s36, {P['POLLMAX']}")
    e("    s_waitcnt vmcnt(0)")
    stamp(5)
    for n in range(4):
        e(f"    v_mov_b32_dpp v{8+n}, v{54+n} row_newbcast:12 row_mask:0xf bank_mask:0xf")
    for n in range(4):
        e(f"    v_add_f32 v{50+n}, v{50+n}, v{54+n}")
    for n in range(4):
        e(f"    v_cmp_eq_f32 s[{64+2*n}:{65+2*n}], v{8+n}, v58")
    for n in range(4):
        e(f"    v_or_b32 v{50+n}, 1, v{50+n}")
    for n in range(4):
        e(f"    s_and_b64 exec, s[{64+2*n}:{65+2*n}], s[10:11]")
        e(f"    s_cbranch_execz L_nopush{n}")
        e(f"    global_atomic_or v49, v{50+n}, s[4:5] offset:{256*n}")
        e(f"L_nopush{n}:")
    e("    s_mov_b64 exec, -1")
    if P["FORCE_FALLBACK"]:
        e("    s_branch L_fallback")
    if P["TRIG"]:
        import struct as _st
        tbits = _st.unpack("<I", _st.pack("<f", float(P["TRIG"] - 1)))[0]
        e("    v_readlane_b32 s35, v54, 12")
        e("    v_mov_b32 v60, 1")
        e(f"    s_cmp_lg_u32 s35, {tbits}")
        e("    s_cbranch_scc1 L_trigcheck")
        e("    s_cmp_lg_u32 s34, 0")
        e("    s_cbranch_scc1 L_trigcheck")
        e("    s_mov_b64 exec, 1")
        e("    global_store_dword v62, v60, s[12:13] offset:128 sc1   ; trigger")
        e("    s_mov_b64 exec, -1")
        e("L_trigwait:")
        e("    global_load_dword v61, v62, s[12:13] offset:128 sc1")
        e("    s_waitcnt vmcnt(0)")
        e("L_trigcheck:")
        e("    v_readfirstlane_b32 s35, v61")
        e("    s_cmp_lg_u32 s35, 0")
        e("    s_cbranch_scc1 L_accpoll0")
        e("    s_sub_u32 s36, s36, 1")
        e("    s_cbranch_scc0 L_trigwait")
        e("    s_branch L_fallback")
        e("L_accpoll0:")
        e(f"    s_mov_b32 s35, {P['KACC'] - 1}")
        e("L_accpoll:")
        for r in range(4):
            b = "s[14:15]" if r < 2 else "s[38:39]"
            e(f"    global_load_dwordx4 v[{8+4*r}:{11+4*r}], v59, {b} offset:{WS_ACC + (r % 2) * 2048} sc1")
        for r in range(1, 4):
            e(f"    s_waitcnt vmcnt({3-r})")
            e(f"    v_pk_add_f32 v[8:9], v[8:9], v[{8+4*r}:{9+4*r}]")
            e(f"    v_pk_add_f32 v[10:11], v[10:11], v[{10+4*r}:{11+4*r}]")
        e("    v_cmp_neq_f32 vcc, 0x43800000, v8")
        e("    s_mov_b32 exec_lo, 0x77777777")
        e("    s_mov_b32 exec_hi, 0x77777777")
        e("    s_and_b64 vcc, vcc, s[76:77]")
        e("    s_cbranch_scc0 L_pollok")
        e("    s_mov_b64 exec, -1")
        e("    s_sub_u32 s35, s35, 1")
        e("    s_cbranch_scc0 L_accpoll")
    e("    s_mov_b32 exec_lo, 0x77777777")
    e("    s_mov_b32 exec_hi, 0x77777777")
    rep_regs = [8, 12, 16, 20, 48, 52, 56, 60]

    def poll_issue(regs):
        for r in range(R):
            d = regs[r]
            b = "s[4:5]" if r < 4 else "s[6:7]"
            e(f"    global_load_dwordx4 v[{d}:{d+3}], v3, {b} offset:{(r % 4) * 1024} sc1")

    def poll_check(regs, later):
        a = regs[0]
        e(f"    s_waitcnt vmcnt({R-1+later})")
        e(f"    v_and_b32 v2, v{a}, v{a+1}")
        e(f"    v_and_b32 v4, v{a+2}, v{a+3}")
        for r in range(1, R):
            e(f"    s_waitcnt vmcnt({R-1-r+later})")
            d = regs[r]
            e(f"    v_bitop3_b32 v2, v2, v{d}, v{d+1} bitop3:0x80")
            e(f"    v_bitop3_b32 v4, v4, v{d+2}, v{d+3} bitop3:0x80")
            e(f"    v_pk_add_f32 v[{a}:{a+1}], v[{a}:{a+1}], v[{d}:{d+1}]")
            e(f"    v_pk_add_f32 v[{a+2}:{a+3}], v[{a+2}:{a+3}], v[{d+2}:{d+3}]")
        e("    v_bitop3_b32 v2, v2, v4, 1 bitop3:0x80")
        e("    v_cmp_ne_u32 vcc, 1, v2")

    if P["PIPE"]:
        assert R <= 4
        A, B = rep_regs[:4], rep_regs[4:]
        poll_issue(A)
        e("L_poll:")
        poll_issue(B)
        poll_check(A, R)
        e("    s_cbranch_vccz L_pollokA")
        poll_issue(A)
        poll_check(B, R)
        e("    s_cbranch_vccz L_pollokB")
        e("    s_sub_u32 s36, s36, 1")
        e("    s_cbranch_scc0 L_poll")
        e("    s_mov_b64 exec, -1")
        e("    s_branch L_fallback")
        e("L_pollokB:")
        e("    s_waitcnt vmcnt(0)")
        for q in range(4):
            e(f"    v_mov_b32 v{8+q}, v{48+q}")
        e("L_pollokA:")
        e("    s_waitcnt vmcnt(0)")
    else:
        e("L_poll:")
        poll_issue(rep_regs)
        poll_check(rep_regs, 0)
        e("    s_cbranch_vccz L_pollok")
        if P["SLEEP"]:
            e(f"    s_sleep {P['SLEEP']}")
        e("    s_sub_u32 s36, s36, 1")
        e("    s_cbranch_scc0 L_poll")
        e("    s_mov_b64 exec, -1")
        e("    s_branch L_fallback")
    e("L_pollok:")
    stamp(6)
    e("L_mlp:")
    stamp(7)
    e("    s_mov_b32 s34, 0x36800000              ; 2^-18")
    e("    s_mov_b32 s35, 0x36800000")
    e("    v_pk_mul_f32 v[8:9], v[8:9], s[34:35]")
    e("    v_pk_mul_f32 v[10:11], v[10:11], s[34:35]")
    e("    v_cvt_pk_bf16_f32 v8, v8, v9")
    e("    v_cvt_pk_bf16_f32 v9, v10, v11")
    e("    v_lshrrev_b32 v10, 1, v3               ; 8q")
    e("    v_lshrrev_b32 v11, 6, v3               ; q>>2")
    e("    v_lshlrev_b32 v11, 3, v11")
    e("    v_sub_u32 v10, v10, v11                ; 24*(q>>2) + 8*(q&3)")
    e(f"    ds_write_b64 v10, v[8:9] offset:{L_S}")
    e("    s_mov_b64 exec, s[72:73]")
    e("    v_lshlrev_b32 v10, 4, v5               ; 16*g4")
    sregs = [12, 16, 20, 48, 52, 56]
    for kk in range(6):
        d = sregs[kk]
        e(f"    ds_read_b128 v[{d}:{d+3}], v10 offset:{L_S + 64*kk}")
    for kk in range(6):
        d = sregs[kk]
        w = 24 + 4 * kk
        e(f"    s_waitcnt lgkmcnt({5-kk})" if not P["DIAG"] else "    s_waitcnt lgkmcnt(0)")
        c = "0" if kk == 0 else "v[8:11]"
        e(f"    v_mfma_f32_16x16x32_bf16 v[8:11], v[{d}:{d+3}], v[{w}:{w+3}], {c}")
    for p in range(6):
        e(f"    ds_read_b128 v[{24+4*p}:{27+4*p}], v3 offset:{L_WU + 1024*p}")
    e("    s_mov_b32 s34, 0xbfb8aa3b              ; -log2(e)")
    e("    s_mov_b32 s35, 0xbfb8aa3b")
    e("    s_nop 1")
    e("    v_cvt_pk_bf16_f32 v8, v8, v8")
    e("    v_lshlrev_b32 v8, 16, v8")
    e("    v_mul_f32 v9, s34, v8")
    e("    v_exp_f32 v9, v9")
    e("    s_nop 0")
    e("    v_add_f32 v9, 1.0, v9")
    e("    v_rcp_f32 v9, v9")
    e("    s_nop 0")
    e("    v_mul_f32 v8, v8, v9                   ; silu")
    e("    s_nop 1")
    e("    v_mov_b32_dpp v9, v8 quad_perm:[1,0,3,2] row_mask:0xf bank_mask:0xf")
    e("    v_cvt_pk_bf16_f32 v8, v8, v9           ; even lanes: {h[j], h[j+1]}")
    e("    s_nop 0")
    for p in range(6):
        e(f"    v_readlane_b32 s{64+p}, v8, {2*p}")
    e("    s_waitcnt lgkmcnt(0)")
    for p in range(6):
        for n in range(4):
            c = "0" if p == 0 else f"v{12+n}"
            e(f"    v_dot2_f32_bf16 v{12+n}, v{24+4*p+n}, s{64+p}, {c}")
    e("    s_nop 2")
    e("    v_cvt_pk_bf16_f32 v8, v12, v13")
    e("    v_cvt_pk_bf16_f32 v9, v14, v15")
    e("    v_lshlrev_b32 v12, 16, v8")
    e("    v_and_b32 v13, 0xffff0000, v8")
    e("    v_lshlrev_b32 v14, 16, v9")
    e("    v_and_b32 v15, 0xffff0000, v9")
    e("    v_pk_mul_f32 v[12:13], v[12:13], s[34:35]")
    e("    v_pk_mul_f32 v[14:15], v[14:15], s[34:35]")
    for n in range(4):
        e(f"    v_exp_f32 v{12+n}, v{12+n}")
    e("    s_nop 0")
    for n in range(4):
        e(f"    v_add_f32 v{12+n}, 1.0, v{12+n}")
    for n in range(4):
        e(f"    v_rcp_f32 v{12+n}, v{12+n}")
    e("    s_nop 0")
    e("    v_cvt_pk_bf16_f32 v8, v12, v13")
    e("    v_cvt_pk_bf16_f32 v9, v14, v15")
    e("    v_lshlrev_b32 v12, 16, v8")
    e("    v_and_b32 v13, 0xffff0000, v8")
    e("    v_lshlrev_b32 v14, 16, v9")
    e("    v_and_b32 v15, 0xffff0000, v9")
    e(f"    ds_write_b128 v3, v[12:15] offset:{L_G}")
    e("    s_waitcnt lgkmcnt(0)")
    stamp(8)
    e("    s_mov_b64 exec, -1")
    if P["PRIO"]:
        e("    s_setprio 0")
    e("L_wait_g:")
    e("    s_waitcnt vmcnt(0)")
    e("    s_barrier                              ; B3")
    if P["MEAS"]:
        e("    s_memrealtime s[44:45]")
    e("    ds_read_b128 v[24:27], v6")
    e("    ds_read_b128 v[28:31], v6 offset:16")
    e("    ds_read_b128 v[32:35], v7")
    e("    ds_read_b128 v[36:39], v7 offset:16")
    if LAY:
        e("    ds_read_b128 v[40:43], v1")
        e("    ds_read_b128 v[44:47], v1 offset:16")
    else:
        e("    ds_read_b128 v[40:43], v6 offset:256")
        e("    ds_read_b128 v[44:47], v6 offset:272")
    e("    s_mov_b32 s34, 0xffff0000")
    cnt = [0]

    def store_unit(slot):
        for m in range(3):
            d = 64 + 12 * slot + 4 * m
            g = 24 + 8 * m
            tb = 8 + 8 * (cnt[0] % 2)
            cnt[0] += 1
            for q in range(4):
                e(f"    v_lshlrev_b32 v{tb+2*q}, 16, v{d+q}")
                e(f"    v_and_b32 v{tb+2*q+1}, s34, v{d+q}")
            for q in range(4):
                e(f"    v_pk_mul_f32 v[{tb+2*q}:{tb+2*q+1}], v[{tb+2*q}:{tb+2*q+1}], v[{g+2*q}:{g+2*q+1}]")
            for q in range(4):
                e(f"    v_cvt_pk_bf16_f32 v{d+q}, v{tb+2*q}, v{tb+2*q+1}")
            if P["WS"]:
                e(f"    s_waitcnt vmcnt({P['WS'] - 1})")
            fl = P["STF"]
            if cnt[0] > 3 * NE - P["PL"]:
                fl = P["PLF"]
            e(f"    buffer_store_dwordx4 v[{d}:{d+3}], {VOFF}, s[20:23], s32 offen offset:{MOFF*m} {fl}")

    e("    s_waitcnt lgkmcnt(0)")
    assert GRP == 1 or NX == 0
    for t in range(NX, NO):
        set_off(t)
        store_unit(t)
    if NE > NO:
        for x in range(NX):
            set_off(16 + x, None, x)
            store_unit(x)
        e("    s_bitcmp1_b32 s2, 0")
        e("    s_cbranch_scc1 L_st_done")
        for x in range(NX):
            for m in range(3):
                d = 64 + 12 * x + 4 * m
                e(f"    ds_read_b128 v[{d}:{d+3}], v0 offset:{3072 * x + 1024 * m}")
        for t in range(NO, 16):
            set_off(t, 0)
            store_unit(t)
        e("    s_waitcnt lgkmcnt(0)")
        for t in range(NX):
            set_off(t, 0)
            store_unit(t)
        e("L_st_done:")
    if P["REPS"]:
        assert NE == 16
        for i in range(48):
            t, m = divmod(i, 3)
            if m == 0:
                e("    s_mov_b32 s32, s33" if t == 0 else f"    s_add_u32 s32, s32, {step}")
            d = 64 + 4 * i
            e(f"    buffer_store_dwordx4 v[{d}:{d+3}], {VOFF}, s[20:23], s32 offen offset:{MOFF*m} {P['STF']}")
    if P["DIAG"]:
        stamp(9)
        e("    s_waitcnt vmcnt(0)")
        stamp(10)
        e("    s_lshl_b32 s34, s2, 3")
        e("    s_add_u32 s34, s34, s3")
        e("    s_lshl_b32 s34, s34, 6")
        e(f"    s_add_u32 s34, s34, {WS_DIAG}")
        e("    v_mov_b32 v8, s34")
        e("    s_waitcnt lgkmcnt(0)")
        e("    s_mov_b64 exec, 1")
        for k in range(12):
            e(f"    v_mov_b32 v{12+k}, s{40+2*k}")
        e("    s_getreg_b32 s34, hwreg(HW_REG_XCC_ID)")
        e("    v_mov_b32 v24, s34")
        e("    v_mov_b32 v25, s36")
        e("    global_store_dwordx4 v8, v[12:15], s[14:15]")
        e("    global_store_dwordx4 v8, v[16:19], s[14:15] offset:16")
        e("    global_store_dwordx4 v8, v[20:23], s[14:15] offset:32")
        e("    global_store_dwordx2 v8, v[24:25], s[14:15] offset:48")
    if P["MEAS"]:
        e("    s_cmp_lg_u32 s3, 0")
        e("    s_cbranch_scc1 L_end")
        e("    v_mov_b32 v57, 192")
        e("    global_load_dword v56, v57, s[12:13] sc1")
        e("    s_waitcnt vmcnt(0)")
        e("    s_memrealtime s[46:47]")
        e("    v_readfirstlane_b32 s42, v56")
        e("    s_waitcnt lgkmcnt(0)")
        e("    s_not_b32 s42, s42")
        if P["MEAS"] == 1:
            e("    s_sub_u32 s43, s46, s42")
        elif P["MEAS"] == 2:
            e("    s_sub_u32 s43, s44, s42")
        elif P["MEAS"] == 3:
            e("    s_sub_u32 s43, s40, s42")
            e("    s_mul_i32 s43, s43, 10")
        elif P["MEAS"] == 5:
            e("    s_sub_u32 s43, s40, s50")
            e("    s_mul_i32 s43, s43, 40")
        else:
            e("    s_mov_b32 s43, 0")
        e("    s_min_u32 s43, s43, 100000")
        e("L_mspin:")
        e("    s_sleep 1")
        e("    s_memrealtime s[48:49]")
        e("    s_waitcnt lgkmcnt(0)")
        e("    s_sub_u32 s48, s48, s46")
        e("    s_cmp_lt_u32 s48, s43")
        e("    s_cbranch_scc1 L_mspin")
    e("L_end:")
    e("    s_endpgm")
    e("L_others:")
    if P["DRYW"] >= 0:
        e(f"    s_cmp_lg_u32 s3, {P['DRYW']}")
        e("    s_cbranch_scc1 L_wait_g")
    if P["PFC"]:
        e("    s_getpc_b64 s[74:75]")
        e("L_pc:")
        e("    s_sub_u32 s74, s74, L_pc-L_wait_g")
        e("    s_subb_u32 s75, s75, 0")
        e("    v_lshlrev_b32 v8, 3, v3                ; lane*128")
        e("    v_min_u32 v8, L_end-L_wait_g, v8")
        e("    global_load_dword v63, v8, s[74:75]")
    if P["DRY"]:
        e("    s_mov_b64 s[72:73], 0")
        e("    s_mov_b64 exec, 0")
        e("    s_branch L_mlp")
    else:
        e("    s_branch L_wait_g")
    e("L_fallback:")
    e("    s_waitcnt vmcnt(0) lgkmcnt(0)")
    e("    v_bfe_u32 v4, v3, 4, 4                 ; j again")
    build_A()
    image_addr()
    e("    s_mov_b32 s36, 0")
    e("L_fb_loop:")
    for m in range(3):
        e(f"    buffer_load_dwordx4 v[{48+4*m}:{51+4*m}], {VOFF}, s[16:19], s36 offen offset:{MOFF*m}")
    e("    s_waitcnt vmcnt(0)")
    for m in range(3):
        mfma_for(48 + 4 * m, m)
    e("    s_add_u32 s36, s36, 3072")
    e(f"    s_cmp_lt_u32 s36, {XBYTES}")
    e("    s_cbranch_scc1 L_fb_loop")
    e("    s_nop 7")
    acc_fold()
    e(f"    ds_write_b128 v60, v[16:19] offset:{L_PART}")
    gather_addr()
    gather_wd(range(6), 8)
    e(f"    ds_read_b128 v[8:11], v3 offset:{L_PART}")
    e("    s_waitcnt lgkmcnt(0)")
    e("    s_mov_b32 exec_lo, 0x77777777")
    e("    s_mov_b32 exec_hi, 0x77777777")
    e("    s_branch L_mlp")
    e('.section .rodata,"a"')
    e(".p2align 6")
    e(f".amdhsa_kernel {NAME}_kernel")
    e("  .amdhsa_next_free_vgpr 256")
    e("  .amdhsa_next_free_sgpr 80")
    e("  .amdhsa_accum_offset 256")
    e("  .amdhsa_group_segment_fixed_size 0")
    e("  .amdhsa_kernarg_size 48")
    e("  .amdhsa_user_sgpr_count 2")
    e("  .amdhsa_user_sgpr_kernarg_segment_ptr 1")
    e("  .amdhsa_system_sgpr_workgroup_id_x 1")
    e("  .amdhsa_float_denorm_mode_32 3")
    e("  .amdhsa_float_denorm_mode_16_64 3")
    e(".end_amdhsa_kernel")
    return "\n".join(o) + "\n"


def parse_args(argv):
    out = None
    kw = {}
    for a in argv:
        if "=" in a:
            k, v = a.split("=", 1)
            try:
                v = int(v)
            except ValueError:
                v = v.replace("+", " ")
            kw[k] = v
        else:
            out = a
    return out, kw


if __name__ == "__main__":
    out, kw = parse_args(sys.argv[1:])
    txt = gen(**kw)
    if out:
        open(out, "w").write(txt)
    else:
        sys.stdout.write(txt)
```

```python
import sys
import math

NAME = "standalone__channel_attn_se__vision"
XBYTES = 512 * 512 * 192 * 2

DEFAULTS = dict(
    LDF="nt",
    STF="sc0 sc1",
    DIAG=0,
    FLAGBACK=14,
    SLEEP=0,
    POLLMAX=8192,
    FORCE_FALLBACK=0,
    NE=18,
    WE=3,
    WO="2.5",
    REPSH=3,
    R=4,
    TOUCH=0,
    FEARLY=0,
    PUB4=0,
    EARLY=1,
    TRIM=1,
    SPRE=0,
    LAY=0,
    MSEP=0,
    MAP="A",
    PL=0,
    PLF="",
    PF=0,
    MEAS=0,
    TRIG=0,
    KACC=3,
    TRAIL=1,
    HEAD=6,
    GRP=1,
    PRIO=1,
    DRYW=5,
    WS=0,
    PIPE=0,
    REPL=0,
    REPS=0,
    PRE=0,
    DRY=1,
    PFC=1,
    TAILE=6,
    TAILO=4,
    TR=1,
)

L_PART = 0x0000
L_S = 0x2000
L_G = 0x2400
L_WD = 0x3000
L_WU = 0x5000
L_X = 0x7000

WS_ACC = 0
WS_F = 16384
WS_DIAG = 65536


HEADER = """
;
"""


def gen(**kw):
    P = dict(DEFAULTS)
    P.update(kw)
    o = []
    e = o.append
    R = P["R"]
    assert R in (1, 2, 4, 8)
    NE = P["NE"]
    NO = 32 - NE
    NX = NE - 16
    assert 0 <= NX <= NO
    LDS_BYTES = L_X + 8 * NX * 3072
    step = 2048 * 3072
    bstep = 1024 * 3072
    if P["MAP"] == "B":
        step = bstep = 8 * 3072
    elif P["MAP"] == "X":
        step = 256 * 3072
        bstep = 128 * 3072

    def stamp(k):
        if P["DIAG"]:
            e(f"    s_memrealtime s[{40+2*k}:{41+2*k}]")

    LAY = P["LAY"]
    MOFF = 1024 if LAY else 256
    VOFF = "v3" if LAY else "v1"

    def build_A():
        e("    v_and_b32 v16, 1, v4")
        e("    v_cmp_eq_u32 vcc, 1, v16")
        e("    v_mov_b32 v17, 0x3f80")
        e("    v_mov_b32 v18, 0x3f800000")
        e("    v_cndmask_b32 v17, v17, v18, vcc")
        if LAY:
            e("    v_lshrrev_b32 v18, 3, v4")
            e("    v_add_u32 v19, 3, v5")
            e("    v_sub_u32 v19, v19, v18                ; g4 - half + 3  (2..6)")
            e("    v_mul_u32_u24 v20, 43, v19")
            e("    v_lshrrev_b32 v20, 7, v20")
            e("    v_mul_u32_u24 v20, 3, v20")
            e("    v_sub_u32 v19, v19, v20")
            e("    v_bfe_u32 v16, v4, 1, 2                ; (j>>1)&3")
            e("    v_lshl_add_u32 v16, v19, 2, v16")
            for q in range(12):
                e(f"    v_cmp_eq_u32 vcc, {q}, v16")
                e("    s_nop 1")
                e(f"    v_cndmask_b32 v{32+q}, 0, v17, vcc")
        else:
            e("    v_lshrrev_b32 v16, 1, v4               ; j>>1")
            for q in range(8):
                e(f"    v_cmp_eq_u32 vcc, {q}, v16")
                e("    s_nop 1")
                e(f"    v_cndmask_b32 v{8+q}, 0, v17, vcc")
        for q in range(12):
            e(f"    v_mov_b32 v{16+q}, 0")
        e("    v_mov_b32 v28, 0x3e000000")

    def image_addr():
        e("    v_lshrrev_b32 v60, 1, v5")
        e("    v_lshlrev_b32 v60, 5, v60")
        e("    v_lshl_add_u32 v60, v4, 1, v60")
        e("    v_and_b32 v61, 1, v5")
        e("    v_add_u32 v60, v60, v61                ; slot = 32*(g4>>1) + 2j + (g4&1)")
        e("    v_mul_u32_u24 v61, 43, v60")
        e("    v_lshrrev_b32 v61, 7, v61              ; slot/3")
        e("    v_add_u32 v61, v60, v61")
        e("    v_lshlrev_b32 v63, 2, v60")
        e("    v_subrev_u32 v63, 189, v63")
        e("    v_cmp_gt_u32 vcc, 48, v60")
        e("    s_nop 1")
        e("    v_cndmask_b32 v60, v63, v61, vcc")
        e("    v_lshlrev_b32 v60, 4, v60")

    def mfma_for(d, m):
        if LAY:
            for acc, c in ((16, 0), (24, 1), (20, 2)):
                a = 32 + 4 * ((c - m) % 3)
                e(f"    v_mfma_f32_16x16x32_bf16 v[{acc}:{acc+3}], v[{a}:{a+3}], v[{d}:{d+3}], v[{acc}:{acc+3}]")
            return
        if m == 0:
            e(f"    v_mfma_f32_16x16x32_bf16 v[16:19], v[8:11], v[{d}:{d+3}], v[16:19]")
        elif m == 1:
            e(f"    v_mfma_f32_16x16x32_bf16 v[16:19], v[12:15], v[{d}:{d+3}], v[16:19]")
            e(f"    v_mfma_f32_16x16x32_bf16 v[24:27], v[8:11], v[{d}:{d+3}], v[24:27]")
        else:
            e(f"    v_mfma_f32_16x16x32_bf16 v[24:27], v[12:15], v[{d}:{d+3}], v[24:27]")
            e(f"    v_mfma_f32_16x16x32_bf16 v[20:23], v[8:11], v[{d}:{d+3}], v[20:23]")

    def acc_fold():
        for r in range(4):
            e(f"    v_add_f32_dpp v{16+r}, v{24+r}, v{16+r} row_ror:8 row_mask:0xf bank_mask:0x3")
        for r in range(4):
            e(f"    v_add_f32_dpp v{16+r}, v{20+r}, v{16+r} row_ror:8 row_mask:0x3 bank_mask:0xc")
        e("    v_mov_b32_dpp v16, v28 quad_perm:[0,1,2,3] row_mask:0xc bank_mask:0xc")

    def gather_addr():
        if P["TR"]:
            e("    v_mul_u32_u24 v63, 192, v5")
            e("    v_lshrrev_b32 v59, 2, v4")
            e("    v_mad_u32_u24 v63, v59, 24, v63")
            e("    v_and_b32 v59, 3, v4")
            e("    v_lshl_add_u32 v63, v59, 3, v63")
        else:
            e("    v_mul_u32_u24 v63, 192, v5")
            e("    v_lshl_add_u32 v63, v4, 1, v63")

    def gather_wd(kks, tmp):
        if P["TR"]:
            for kk in kks:
                for h in range(2):
                    d = 24 + 4 * kk + 2 * h
                    e(f"    ds_read_b64_tr_b16 v[{d}:{d+1}], v63 offset:{L_WD + 768 * kk + 96 * h}")
            return
        for kk in kks:
            for q in range(4):
                off = L_WD + 768 * kk + 48 * q
                e(f"    ds_read_u16 v{tmp+2*q}, v63 offset:{off}")
                e(f"    ds_read_u16 v{tmp+1+2*q}, v63 offset:{off+24}")
            e("    s_waitcnt lgkmcnt(0)")
            for q in range(4):
                e(f"    v_lshl_or_b32 v{24+4*kk+q}, v{tmp+1+2*q}, 16, v{tmp+2*q}")

    if P["DIAG"] or P["MEAS"]:
        e(f"; diagnostic build; params {P}")
    for line in HEADER.strip("\n").split("\n"):
        e(line)
    e(f"; @launch grid=(256,1,1) block=(512,1,1) lds={LDS_BYTES}")
    e('.amdgcn_target "amdgcn-amd-amdhsa--gfx950"')
    e(".text")
    e(f".globl {NAME}_kernel")
    e(".p2align 8")
    e(f".type {NAME}_kernel,@function")
    e(f"{NAME}_kernel:")
    if P["MEAS"] >= 5:
        e("    s_memrealtime s[50:51]")
    e("    s_load_dwordx8 s[4:11], s[0:1], 0")
    e("    s_load_dwordx4 s[12:15], s[0:1], 32")
    stamp(0)
    e("    s_cmp_ge_u32 s2, 256")
    e("    s_cbranch_scc1 L_end")
    e("    v_and_b32 v2, 63, v0                   ; lane")
    e("    v_lshrrev_b32 v3, 6, v0")
    e("    v_and_b32 v4, 15, v0                   ; j")
    e("    v_bfe_u32 v5, v0, 4, 2                 ; g4")
    if not LAY:
        e("    v_mul_u32_u24 v1, 768, v5")
        e("    v_lshl_add_u32 v1, v4, 4, v1           ; 768*g4 + 16*j")
    e("    v_readfirstlane_b32 s3, v3")
    e("    v_lshlrev_b32 v6, 4, v0")
    e("    v_mul_u32_u24 v7, 768, v3")
    e("    v_lshl_add_u32 v7, v2, 3, v7")
    e("    v_lshlrev_b32 v3, 4, v2                ; lane*16")
    GRP = P["GRP"]
    assert NO % GRP == 0 and (NE - NO) % GRP == 0
    if P["MAP"] == "A":
        e("    s_lshl_b32 s33, s2, 3")
        e("    s_add_u32 s33, s33, s3")
        e(f"    s_mul_i32 s33, s33, {3072 * GRP}")
        e("    s_lshr_b32 s37, s2, 1")
        e("    s_lshl_b32 s37, s37, 3")
        e("    s_add_u32 s37, s37, s3")
        e(f"    s_mul_i32 s37, s37, {3072 * GRP}")
        e(f"    s_add_u32 s37, s37, {NO * step}")
    elif P["MAP"] == "M":
        e("    s_lshr_b32 s33, s2, 1")
        e("    s_lshl_b32 s33, s33, 3")
        e("    s_add_u32 s33, s33, s3")
        e("    s_mul_i32 s33, s33, 3072")
    elif P["MAP"] == "B":
        e("    s_lshr_b32 s33, s2, 1")
        e("    s_lshl_b32 s33, s33, 8")
        e("    s_and_b32 s34, s2, 1")
        e(f"    s_mul_i32 s34, s34, {8 * NE}")
        e("    s_add_u32 s33, s33, s34")
        e("    s_add_u32 s33, s33, s3")
        e("    s_mul_i32 s33, s33, 3072")
        e(f"    s_add_u32 s37, s33, {NO * step}")
    elif P["MAP"] == "X":
        e("    s_lshr_b32 s34, s2, 5")
        e(f"    s_mul_i32 s34, s34, {XBYTES // 8}")
        e("    s_and_b32 s35, s2, 31")
        e("    s_lshl_b32 s33, s35, 3")
        e("    s_add_u32 s33, s33, s3")
        e("    s_mul_i32 s33, s33, 3072")
        e("    s_add_u32 s33, s33, s34")
        e("    s_lshr_b32 s37, s35, 1")
        e("    s_lshl_b32 s37, s37, 3")
        e("    s_add_u32 s37, s37, s3")
        e("    s_mul_i32 s37, s37, 3072")
        e("    s_add_u32 s37, s37, s34")
        e(f"    s_add_u32 s37, s37, {NO * step}")
    e("    s_mov_b32 s18, %d" % XBYTES)
    e("    s_mov_b32 s19, 0x00020000")
    e("    s_mov_b32 s22, %d" % XBYTES)
    e("    s_mov_b32 s23, 0x00020000")
    e("    s_mov_b32 s26, 4608")
    e("    s_mov_b32 s27, 0x00020000")
    e("    s_mov_b32 s30, 4608")
    e("    s_mov_b32 s31, 0x00020000")
    e("    s_waitcnt lgkmcnt(0)")
    e("    s_mov_b32 s16, s4")
    e("    s_mov_b32 s17, s5")
    e("    s_mov_b32 s24, s6")
    e("    s_mov_b32 s25, s7")
    e("    s_mov_b32 s28, s8")
    e("    s_mov_b32 s29, s9")
    e("    s_mov_b32 s20, s10")
    e("    s_mov_b32 s21, s11")
    stamp(11)
    if P["MEAS"]:
        e("    s_memrealtime s[40:41]")
        e("    s_waitcnt lgkmcnt(0)")
        e("    s_cmp_lg_u32 s3, 0")
        e("    s_cbranch_scc1 L_ms0")
        e("    s_not_b32 s42, s40")
        e("    v_mov_b32 v56, s42")
        e("    v_mov_b32 v57, 192")
        e("    s_mov_b64 exec, 1")
        e("    global_atomic_umax v57, v56, s[12:13]")
        e("    s_mov_b64 exec, -1")
        e("L_ms0:")
    if P["PRE"]:
        e("    s_cmp_lg_u32 s3, 7")
        e("    s_cbranch_scc1 L_nopre")
        e("    v_lshlrev_b32 v56, 21, v2")
        if P["PRE"] & 1:
            e("    buffer_load_dword v57, v56, s[16:19], 0 offen nt")
        if P["PRE"] & 2:
            e("    buffer_load_dword v58, v56, s[20:23], 0 offen nt")
        e("L_nopre:")

    def setup_misc(tag):
        e("    buffer_load_dwordx4 v[48:51], v6, s[24:27], 0 offen")
        e("    buffer_load_dwordx2 v[52:53], v7, s[28:31], 0 offen")
        e("    buffer_load_dwordx2 v[54:55], v7, s[28:31], 0 offen offset:384")
        e(f"    s_add_u32 s4, s14, {WS_F}")
        e("    s_addc_u32 s5, s15, 0")
        e(f"    s_add_u32 s6, s14, {WS_F + 4096}")
        e("    s_addc_u32 s7, s15, 0")
        e("    v_mov_b32 v62, 0")
        if tag == "e":
            e("    s_or_b32 s34, s2, s3")
            e("    s_cmp_lg_u32 s34, 0")
            e("    s_cbranch_scc1 L_noinit")
            for q in range(4):
                e(f"    v_mov_b32 v{8+q}, 0")
            e("    v_lshrrev_b32 v12, 2, v2")
            e("    v_lshlrev_b32 v12, 7, v12")
            e("    v_and_b32 v13, 3, v2")
            e("    v_lshl_add_u32 v12, v13, 4, v12")
            for r in range(R):
                if r and r % 2 == 0:
                    e("    v_add_u32 v12, 4096, v12")
                e(f"    global_store_dwordx4 v12, v[8:11], s[14:15] offset:{WS_ACC + (r % 2) * 2048} sc1")
            for r in range(R):
                b = "s[4:5]" if r < 4 else "s[6:7]"
                e(f"    global_store_dwordx4 v3, v[8:11], {b} offset:{(r % 4) * 1024} sc1")
            e("    v_mov_b32 v13, 1")
            e("    s_waitcnt vmcnt(0)")
            e("    s_mov_b64 exec, 1")
            e("    global_store_dword v62, v13, s[12:13] sc1")
            e("    s_mov_b64 exec, -1")
            e("L_noinit:")
        build_A()
        image_addr()
        e("    s_lshl_b32 s34, s3, 10")
        e("    v_add_u32 v60, s34, v60")
        if NX:
            e(f"    s_mul_i32 s34, s3, {NX * 3072}")
            e(f"    s_add_u32 s34, s34, {L_X}")
            e("    v_add_u32 v0, s34, v3")

    def stage_weights():
        e("    s_mov_b32 s34, 0x05040100")
        e("    s_mov_b32 s35, 0x07060302")
        e(f"    ds_write_b128 v6, v[48:51] offset:{L_WD}")
        e("    v_perm_b32 v56, v54, v52, s34")
        e("    v_perm_b32 v57, v54, v52, s35")
        e("    v_perm_b32 v58, v55, v53, s34")
        e("    v_perm_b32 v59, v55, v53, s35")
        e(f"    ds_write_b128 v6, v[56:59] offset:{L_WU}")
        if LAY:
            for m, dst in ((0, 6), (1, 7), (2, 1)):
                e(f"    v_add_u32 v61, {16*m}, v2")
                e("    v_mul_u32_u24 v63, 171, v61")
                e("    v_lshrrev_b32 v63, 12, v63             ; /24")
                e("    v_mul_u32_u24 v63, 24, v63")
                e("    v_sub_u32 v61, v61, v63")
                e(f"    v_lshlrev_b32 v{dst}, 5, v61")
                e(f"    v_add_u32 v{dst}, {L_G}, v{dst}")
        else:
            e("    v_add_u32 v61, 16, v4")
            e("    v_subrev_u32 v63, 24, v61")
            e("    v_min_u32 v61, v61, v63                ; (16+j) mod 24")
            e("    v_lshlrev_b32 v7, 5, v61")
            e(f"    v_add_u32 v7, {L_G}, v7")
            e("    v_lshlrev_b32 v6, 5, v4")
            e(f"    v_add_u32 v6, {L_G}, v6")

    def publish_addrs():
        e("    v_lshlrev_b32 v59, 2, v2")
        e(f"    s_lshr_b32 s34, s2, {P['REPSH']}")
        e(f"    s_and_b32 s34, s34, {R-1}              ; replica")
        e("    s_lshl_b32 s35, s34, 11")
        e("    v_lshlrev_b32 v48, 7, v5")
        e("    v_lshl_add_u32 v48, v4, 2, v48")
        e("    v_add_u32 v48, s35, v48")
        if P["PUB4"]:
            e("    s_and_b32 s38, s3, 3")
            e("    s_lshl_b32 s39, s38, 9")
            e("    v_add_u32 v48, s39, v48")
            e("    s_lshl_b32 s39, s38, 8")
            e("    v_add_u32 v59, s39, v59")
        e("    s_lshl_b32 s35, s34, 10")
        e("    v_add_u32 v49, s35, v59")
        e("    v_mul_u32_u24 v63, 192, v5")
        e("    v_lshrrev_b32 v58, 2, v4")
        e("    v_mad_u32_u24 v63, v58, 24, v63")
        e("    v_and_b32 v58, 3, v4")
        e("    v_lshl_add_u32 v63, v58, 3, v63")
        e(f"    v_mov_b32 v58, {float(256 // R - 1)}")
        e(f"    s_mov_b32 s36, {P['POLLMAX']}")
        e("    s_mov_b32 s8, 0x1fff1fff")
        e("    s_mov_b32 s9, 0x1fff1fff")
        e("    s_mov_b32 s10, 0x0fff0fff")
        e("    s_mov_b32 s11, 0x0fff0fff")
        e("    s_mov_b32 s76, 0x36800000              ; 2^-18")
        e("    s_mov_b32 s77, 0x36800000")
        e("    s_mov_b32 s78, 0xbfb8aa3b              ; -log2(e)")
        e("    s_mov_b32 s79, 0xbfb8aa3b")
        e("    s_mov_b64 s[72:73], -1")

    def mlp_addrs():
        e("    v_lshrrev_b32 v60, 1, v3               ; 8q")
        e("    v_lshrrev_b32 v61, 6, v3               ; q>>2")
        e("    v_lshlrev_b32 v61, 3, v61")
        e("    v_sub_u32 v60, v60, v61                ; 24*(q>>2) + 8*(q&3)")
        e("    v_lshlrev_b32 v61, 4, v5               ; 16*g4")

    def flag_load(tag):
        e("    s_cmp_lg_u32 s3, 0")
        e(f"    s_cbranch_scc1 L_noflagld{tag}")
        e("    global_load_dword v61, v62, s[12:13] sc1")
        e(f"L_noflagld{tag}:")

    def trail_loads():
        e("    global_load_dword v61, v62, s[12:13] sc1")
        if P["TOUCH"]:
            e(f"    global_load_dword {'v2' if P['TOUCH'] == 2 else 'v47'}, v62, s[6:7] offset:4092 sc1")
            return 2
        return 1

    def consume(i, park):
        t, m = divmod(i, 3)
        d = 64 + 12 * (t % 16) + 4 * m
        mfma_for(d, m)
        if t < park:
            e(f"    ds_write_b128 v0, v[{d}:{d+3}] offset:{3072 * t + 1024 * m}")

    ev = sorted([((t + 0.5) / NE, 0, t) for t in range(NE)] + [((t + 0.5) / NO, 1, t) for t in range(NO)])
    if P["MSEP"]:
        ev = [(0, 0, t) for t in range(NE)] + [(0, 1, t) for t in range(NO)]
    bpos = {(par, t): i for i, (_, par, t) in enumerate(ev)}

    def set_off(t, par=None, t_odd=None):
        if P["MAP"] == "M":
            if par is not None:
                e(f"    s_add_u32 s32, s33, {bpos[(par, t)] * bstep}")
            else:
                e("    s_bitcmp1_b32 s2, 0")
                e(f"    s_cselect_b32 s32, {bpos[(1, t if t_odd is None else t_odd)]}, {bpos[(0, t)]}")
                e(f"    s_mul_i32 s32, s32, {bstep}")
                e("    s_add_u32 s32, s32, s33")
            return
        if t_odd is not None:
            e(f"    s_add_u32 s32, s33, {t_odd * step}")
            e(f"    s_add_u32 s35, s37, {(t - NO) * bstep}")
            e("    s_bitcmp1_b32 s2, 0")
            e("    s_cselect_b32 s32, s32, s35")
            return
        if t < NO:
            e(f"    s_add_u32 s32, s33, {(t // GRP) * GRP * step + (t % GRP) * 3072}")
        else:
            e(f"    s_add_u32 s32, s37, {((t - NO) // GRP) * GRP * bstep + ((t - NO) % GRP) * 3072}")

    def load_path(N, W, tag, tail):
        NL = 3 * N
        park = max(0, N - 16)
        Wf = float(W)
        W = min(int(math.ceil(Wf)), NL - 1, 40)
        frac = W - Wf if Wf < W else 0.0
        H = P["HEAD"]
        assert H >= W
        fpos = NL - P["FLAGBACK"] - tail
        assert fpos > H + 1

        def wait_for(k, issued):
            e(f"    s_waitcnt vmcnt({issued - 1 - k + (3 if k < H else 0)})")

        def use(k):
            consume(k, park)
            if k == H:
                stage_weights()
            if k == H + 3 and P["TRIM"]:
                publish_addrs()
            if k == fpos and not P["TRAIL"]:
                flag_load(tag)

        def do_consume(k, issued):
            wait_for(k, issued)
            use(k)

        nc = 0
        for i in range(H, NL):
            t, m = divmod(i, 3)
            if m == 0:
                set_off(t, 0 if tag == "e" else 1)
            late = None
            if i >= H and i < NL - tail:
                tight = 1 if int(frac * (i + 1)) != int(frac * i) else 0
                last = i - W + tight
                while nc < last:
                    do_consume(nc, i)
                    nc += 1
                if nc == last:
                    wait_for(nc, i)
                    late = nc
                    nc += 1
            if i >= 48 and park:
                assert nc - (1 if late is not None else 0) > i - 48
                e("    s_waitcnt lgkmcnt(0)")
            d = 64 + 12 * (t % 16) + 4 * m
            if P["TRAIL"] and P["FEARLY"] and i == NL - P["FEARLY"]:
                assert P["FEARLY"] <= tail and nc > H + 4
                nearly = trail_loads()
            e(f"    buffer_load_dwordx4 v[{d}:{d+3}], {VOFF}, s[16:19], s32 offen offset:{MOFF*m} {P['LDF']}")
            if late is not None:
                use(late)
        stamp(1)
        extra = 0
        if P["TRAIL"] and not P["FEARLY"]:
            assert nc > H + 4
            extra = trail_loads()
        for k in range(nc, NL):
            do_consume(k, NL + extra + (nearly if (P["FEARLY"] and k < NL - P["FEARLY"]) else 0))

    assert P["HEAD"] % 3 == 0 and P["HEAD"] <= 3 * NO
    for i in range(P["HEAD"]):
        t, m = divmod(i, 3)
        if m == 0:
            set_off(t)
        d = 64 + 12 * t + 4 * m
        e(f"    buffer_load_dwordx4 v[{d}:{d+3}], {VOFF}, s[16:19], s32 offen offset:{MOFF*m} {P['LDF']}")
    if P["SPRE"]:
        e("    s_and_b32 s34, s2, 0xf8")
        e("    s_add_u32 s34, s34, s3")
        if P["SPRE"] & 1:
            e("    s_cmp_ge_u32 s34, 48")
            e("    s_cbranch_scc1 L_sp1")
            e("    s_lshl_b32 s35, s34, 21")
            e("    s_load_dword s78, s[16:17], s35")
            e("L_sp1:")
        if P["SPRE"] & 2:
            e("    s_sub_u32 s34, s34, 64")
            e("    s_cmp_ge_u32 s34, 48")
            e("    s_cbranch_scc1 L_sp2")
            e("    s_lshl_b32 s35, s34, 21")
            e("    s_load_dword s79, s[20:21], s35")
            e("L_sp2:")
    setup_misc("e")
    e("    s_bitcmp1_b32 s2, 0")
    e("    s_cbranch_scc1 L_acc_odd")
    load_path(NE, P["WE"], "e", P["TAILE"])
    e("    s_branch L_acc_done")
    e("L_acc_odd:")
    load_path(NO, P["WO"], "o", P["TAILO"])
    e("L_acc_done:")
    if P["REPL"]:
        assert NE == 16
        for i in range(48):
            t, m = divmod(i, 3)
            if m == 0:
                e("    s_mov_b32 s32, s33" if t == 0 else f"    s_add_u32 s32, s32, {step}")
            e(f"    s_waitcnt vmcnt({P['REPL'] - 1})")
            d = 64 + 4 * i
            e(f"    buffer_load_dwordx4 v[{d}:{d+3}], {VOFF}, s[16:19], s32 offen offset:{MOFF*m} {P['LDF']}")
        e("    s_waitcnt vmcnt(0)")
    stamp(2)
    e("    s_nop 6")
    acc_fold()
    e(f"    ds_write_b128 v60, v[16:19] offset:{L_PART}")
    e("    s_waitcnt lgkmcnt(0)")
    e("    s_barrier                              ; B2")
    if P["TRIM"] and P["PUB4"]:
        assert P["TR"] and not P["TRIG"] and R <= 4 and not P["PIPE"] and not P["SPRE"] and P["TRAIL"]
        assert P["DRYW"] >= 4
        e("    s_cmp_ge_u32 s3, 4")
        e("    s_cbranch_scc1 L_others")
        for wp in range(4):
            e(f"    ds_read2st64_b32 v[{8+2*wp}:{9+2*wp}], v59 offset0:{8*wp} offset1:{8*wp+4}")
        if P["PRIO"]:
            e("    s_setprio 3")
        stamp(3)
        if P["TOUCH"] == 2:
            e("    s_waitcnt vmcnt(1)")
            e("    v_readfirstlane_b32 s35, v61")
            e("    s_cmp_lg_u32 s35, 0")
            e("    s_cbranch_scc1 L_flagok")
        e("L_flagcheck:")
        e("    s_waitcnt vmcnt(0)")
        e("    v_readfirstlane_b32 s35, v61")
        e("    s_cmp_lg_u32 s35, 0")
        e("    s_cbranch_scc1 L_flagok")
        e("    s_sub_u32 s36, s36, 1")
        e("    s_cbranch_scc1 L_noflag")
        e("    s_sleep 4")
        e("    global_load_dword v61, v62, s[12:13] sc1")
        e("    s_branch L_flagcheck")
        e("L_flagok:")
        stamp(4)
        e("    s_mov_b64 exec, s[8:9]")
        e("    s_waitcnt lgkmcnt(0)")
        e("    v_pk_add_f32 v[8:9], v[8:9], v[10:11]")
        e("    v_pk_add_f32 v[12:13], v[12:13], v[14:15]")
        e("    v_pk_add_f32 v[8:9], v[8:9], v[12:13]")
        e("    v_add_f32 v50, v8, v9")
        e(f"    global_atomic_add_f32 v54, v48, v50, s[14:15] offset:{WS_ACC} sc0")
        e("    s_mov_b64 exec, -1")
        gather_wd(range(6), 8)
        mlp_addrs()
        e(f"    s_mov_b32 s36, {P['POLLMAX']}")
        e("    s_waitcnt vmcnt(0)")
        stamp(5)
        e("    v_mov_b32_dpp v8, v54 row_newbcast:12 row_mask:0xf bank_mask:0xf")
        e("    v_add_f32 v50, v50, v54")
        e("    v_cmp_eq_f32 vcc, v8, v58")
        e("    v_or_b32 v50, 1, v50")
        e("    s_and_b64 exec, vcc, s[10:11]")
        e("    s_cbranch_execz L_nopush")
        e("    global_atomic_or v49, v50, s[4:5]")
        e("L_nopush:")
        e("    s_cmp_lg_u32 s3, 0")
        e("    s_cbranch_scc1 L_pubdone")
        if P["FORCE_FALLBACK"]:
            e("    s_mov_b64 exec, -1")
    elif P["TRIM"]:
        assert P["TR"] and not P["TRIG"] and R <= 4 and not P["PIPE"] and not P["SPRE"]
        e("    s_cmp_lg_u32 s3, 0")
        e("    s_cbranch_scc1 L_others")
        for n in range(4):
            for wp in range(4):
                d = 8 + 8 * n + 2 * wp
                e(f"    ds_read2st64_b32 v[{d}:{d+1}], v59 offset0:{8*wp+n} offset1:{8*wp+4+n}")
            if n == 0 and P["PRIO"]:
                e("    s_setprio 3")
        stamp(3)
        e("L_flagcheck:")
        e("    s_waitcnt vmcnt(0)")
        e("    v_readfirstlane_b32 s35, v61")
        e("    s_cmp_lg_u32 s35, 0")
        e("    s_cbranch_scc1 L_flagok")
        e("    s_sub_u32 s36, s36, 1")
        e("    s_cbranch_scc1 L_fallback")
        e("    s_sleep 4")
        e("    global_load_dword v61, v62, s[12:13] sc1")
        e("    s_branch L_flagcheck")
        e("L_flagok:")
        stamp(4)
        e("    s_mov_b64 exec, s[8:9]")
        for n in range(4):
            b_ = 8 + 8 * n
            e(f"    s_waitcnt lgkmcnt({0 if P['DIAG'] else 12 - 4 * n})")
            e(f"    v_pk_add_f32 v[{b_}:{b_+1}], v[{b_}:{b_+1}], v[{b_+2}:{b_+3}]")
            e(f"    v_pk_add_f32 v[{b_+4}:{b_+5}], v[{b_+4}:{b_+5}], v[{b_+6}:{b_+7}]")
            e(f"    v_pk_add_f32 v[{b_}:{b_+1}], v[{b_}:{b_+1}], v[{b_+4}:{b_+5}]")
            e(f"    v_add_f32 v{50+n}, v{b_}, v{b_+1}")
            e(f"    global_atomic_add_f32 v{54+n}, v48, v{50+n}, s[14:15] offset:{WS_ACC + 512*n} sc0")
        e("    s_mov_b64 exec, -1")
        gather_wd(range(6), 8)
        mlp_addrs()
        e(f"    s_mov_b32 s36, {P['POLLMAX']}")
        e("    s_waitcnt vmcnt(0)")
        stamp(5)
        for n in range(4):
            e(f"    v_mov_b32_dpp v{8+n}, v{54+n} row_newbcast:12 row_mask:0xf bank_mask:0xf")
        for n in range(4):
            e(f"    v_cmp_eq_f32 s[{64+2*n}:{65+2*n}], v{8+n}, v58")
        for n in range(4):
            e(f"    s_and_b64 exec, s[{64+2*n}:{65+2*n}], s[10:11]")
            e(f"    s_cbranch_execz L_nopush{n}")
            e(f"    v_add_f32 v{50+n}, v{50+n}, v{54+n}")
            e(f"    v_or_b32 v{50+n}, 1, v{50+n}")
            e(f"    global_atomic_or v49, v{50+n}, s[4:5] offset:{256*n}")
            e(f"L_nopush{n}:")
        if P["FORCE_FALLBACK"]:
            e("    s_mov_b64 exec, -1")
    else:
        e("    s_mov_b64 s[72:73], -1")
        e("    s_cmp_lg_u32 s3, 0")
        e("    s_cbranch_scc1 L_others")
        if P["PRIO"]:
            e("    s_setprio 3")
        stamp(3)
        e("    v_lshlrev_b32 v60, 2, v2               ; lane*4")
        for n in range(4):
            for wp in range(4):
                d = 8 + 8 * n + 2 * wp
                e(f"    ds_read2st64_b32 v[{d}:{d+1}], v60 offset0:{8*wp+n} offset1:{8*wp+4+n}")
        e(f"    s_lshr_b32 s34, s2, {P['REPSH']}")
        e(f"    s_and_b32 s34, s34, {R-1}              ; replica")
        e("    s_lshl_b32 s35, s34, 11")
        e("    v_lshlrev_b32 v48, 7, v5")
        e("    v_lshl_add_u32 v48, v4, 2, v48")
        e("    v_add_u32 v48, s35, v48")
        e("    s_lshl_b32 s35, s34, 10")
        e("    v_add_u32 v49, s35, v60")
        gather_addr()
        e(f"    s_mov_b32 s36, {P['POLLMAX']}")
        e("    s_mov_b32 s8, 0x1fff1fff")
        e("    s_mov_b32 s9, 0x1fff1fff")
        e("    s_mov_b32 s10, 0x0fff0fff")
        e("    s_mov_b32 s11, 0x0fff0fff")
        e(f"    v_mov_b32 v58, {float(256 // R - 1)}")
        if P["TRIG"]:
            assert R == 4
            e("    v_lshrrev_b32 v59, 2, v2")
            e("    v_lshlrev_b32 v59, 7, v59")
            e("    v_and_b32 v60, 3, v2")
            e("    v_lshl_add_u32 v59, v60, 4, v59")
            e("    s_add_u32 s38, s14, 4096")
            e("    s_addc_u32 s39, s15, 0")
            e("    s_mov_b32 s76, 0x88888888")
            e("    s_mov_b32 s77, 0x88888888")
        e("L_flagcheck:")
        e("    s_waitcnt vmcnt(0)")
        e("    v_readfirstlane_b32 s35, v61")
        e("    s_cmp_lg_u32 s35, 0")
        e("    s_cbranch_scc1 L_flagok")
        e("    s_sub_u32 s36, s36, 1")
        e("    s_cbranch_scc1 L_fallback")
        e("    s_sleep 4")
        e("    global_load_dword v61, v62, s[12:13] sc1")
        e("    s_branch L_flagcheck")
        e("L_flagok:")
        stamp(4)
        e("    s_waitcnt lgkmcnt(0)")
        for n in range(4):
            b = 8 + 8 * n
            e(f"    v_pk_add_f32 v[{b}:{b+1}], v[{b}:{b+1}], v[{b+2}:{b+3}]")
            e(f"    v_pk_add_f32 v[{b+4}:{b+5}], v[{b+4}:{b+5}], v[{b+6}:{b+7}]")
        for n in range(4):
            b = 8 + 8 * n
            e(f"    v_pk_add_f32 v[{b}:{b+1}], v[{b}:{b+1}], v[{b+4}:{b+5}]")
        for n in range(4):
            b = 8 + 8 * n
            e(f"    v_add_f32 v{50+n}, v{b}, v{b+1}")
        e("    s_mov_b64 exec, s[8:9]")
        for n in range(4):
            e(f"    global_atomic_add_f32 v{54+n if n < 4 else 0}, v48, v{50+n}, s[14:15] offset:{WS_ACC + 512*n} sc0")
        e("    s_mov_b64 exec, -1")
        if P["TRIG"]:
            e("    global_load_dword v61, v62, s[12:13] offset:128 sc1")
        gather_wd(range(6), 8)
        e(f"    s_mov_b32 s36, {P['POLLMAX']}")
        e("    s_waitcnt vmcnt(0)")
        stamp(5)
        for n in range(4):
            e(f"    v_mov_b32_dpp v{8+n}, v{54+n} row_newbcast:12 row_mask:0xf bank_mask:0xf")
        for n in range(4):
            e(f"    v_add_f32 v{50+n}, v{50+n}, v{54+n}")
        for n in range(4):
            e(f"    v_cmp_eq_f32 s[{64+2*n}:{65+2*n}], v{8+n}, v58")
        for n in range(4):
            e(f"    v_or_b32 v{50+n}, 1, v{50+n}")
        for n in range(4):
            e(f"    s_and_b64 exec, s[{64+2*n}:{65+2*n}], s[10:11]")
            e(f"    s_cbranch_execz L_nopush{n}")
            e(f"    global_atomic_or v49, v{50+n}, s[4:5] offset:{256*n}")
            e(f"L_nopush{n}:")
        e("    s_mov_b64 exec, -1")
    if P["FORCE_FALLBACK"]:
        e("    s_branch L_fallback")
    if P["TRIG"]:
        import struct as _st
        tbits = _st.unpack("<I", _st.pack("<f", float(P["TRIG"] - 1)))[0]
        e("    v_readlane_b32 s35, v54, 12")
        e("    v_mov_b32 v60, 1")
        e(f"    s_cmp_lg_u32 s35, {tbits}")
        e("    s_cbranch_scc1 L_trigcheck")
        e("    s_cmp_lg_u32 s34, 0")
        e("    s_cbranch_scc1 L_trigcheck")
        e("    s_mov_b64 exec, 1")
        e("    global_store_dword v62, v60, s[12:13] offset:128 sc1   ; trigger")
        e("    s_mov_b64 exec, -1")
        e("L_trigwait:")
        e("    global_load_dword v61, v62, s[12:13] offset:128 sc1")
        e("    s_waitcnt vmcnt(0)")
        e("L_trigcheck:")
        e("    v_readfirstlane_b32 s35, v61")
        e("    s_cmp_lg_u32 s35, 0")
        e("    s_cbranch_scc1 L_accpoll0")
        e("    s_sub_u32 s36, s36, 1")
        e("    s_cbranch_scc0 L_trigwait")
        e("    s_branch L_fallback")
        e("L_accpoll0:")
        e(f"    s_mov_b32 s35, {P['KACC'] - 1}")
        e("L_accpoll:")
        for r in range(4):
            b = "s[14:15]" if r < 2 else "s[38:39]"
            e(f"    global_load_dwordx4 v[{8+4*r}:{11+4*r}], v59, {b} offset:{WS_ACC + (r % 2) * 2048} sc1")
        for r in range(1, 4):
            e(f"    s_waitcnt vmcnt({3-r})")
            e(f"    v_pk_add_f32 v[8:9], v[8:9], v[{8+4*r}:{9+4*r}]")
            e(f"    v_pk_add_f32 v[10:11], v[10:11], v[{10+4*r}:{11+4*r}]")
        e("    v_cmp_neq_f32 vcc, 0x43800000, v8")
        e("    s_mov_b32 exec_lo, 0x77777777")
        e("    s_mov_b32 exec_hi, 0x77777777")
        e("    s_and_b64 vcc, vcc, s[76:77]")
        e("    s_cbranch_scc0 L_pollok")
        e("    s_mov_b64 exec, -1")
        e("    s_sub_u32 s35, s35, 1")
        e("    s_cbranch_scc0 L_accpoll")
    e("    s_mov_b32 exec_lo, 0x77777777")
    e("    s_mov_b32 exec_hi, 0x77777777")
    rep_regs = [8, 12, 16, 20, 48, 52, 56, 60]

    def poll_issue(regs):
        for r in range(R):
            d = regs[r]
            b = "s[4:5]" if r < 4 else "s[6:7]"
            e(f"    global_load_dwordx4 v[{d}:{d+3}], v3, {b} offset:{(r % 4) * 1024} sc1")

    def poll_check(regs, later):
        a = regs[0]
        e(f"    s_waitcnt vmcnt({R-1+later})")
        e(f"    v_and_b32 v2, v{a}, v{a+1}")
        e(f"    v_and_b32 v4, v{a+2}, v{a+3}")
        for r in range(1, R):
            e(f"    s_waitcnt vmcnt({R-1-r+later})")
            d = regs[r]
            e(f"    v_bitop3_b32 v2, v2, v{d}, v{d+1} bitop3:0x80")
            e(f"    v_bitop3_b32 v4, v4, v{d+2}, v{d+3} bitop3:0x80")
            e(f"    v_pk_add_f32 v[{a}:{a+1}], v[{a}:{a+1}], v[{d}:{d+1}]")
            e(f"    v_pk_add_f32 v[{a+2}:{a+3}], v[{a+2}:{a+3}], v[{d+2}:{d+3}]")
        e("    v_bitop3_b32 v2, v2, v4, 1 bitop3:0x80")
        e("    v_cmp_ne_u32 vcc, 1, v2")

    if P["PIPE"]:
        assert R <= 4
        A, B = rep_regs[:4], rep_regs[4:]
        poll_issue(A)
        e("L_poll:")
        poll_issue(B)
        poll_check(A, R)
        e("    s_cbranch_vccz L_pollokA")
        poll_issue(A)
        poll_check(B, R)
        e("    s_cbranch_vccz L_pollokB")
        e("    s_sub_u32 s36, s36, 1")
        e("    s_cbranch_scc0 L_poll")
        e("    s_mov_b64 exec, -1")
        e("    s_branch L_fallback")
        e("L_pollokB:")
        e("    s_waitcnt vmcnt(0)")
        for q in range(4):
            e(f"    v_mov_b32 v{8+q}, v{48+q}")
        e("L_pollokA:")
        e("    s_waitcnt vmcnt(0)")
    else:
        e("L_poll:")
        poll_issue(rep_regs)
        poll_check(rep_regs, 0)
        e("    s_cbranch_vccz L_pollok")
        if P["SLEEP"]:
            e(f"    s_sleep {P['SLEEP']}")
        e("    s_sub_u32 s36, s36, 1")
        e("    s_cbranch_scc0 L_poll")
        e("    s_mov_b64 exec, -1")
        e("    s_branch L_fallback")
    e("L_pollok:")
    stamp(6)
    e("L_mlp:")
    stamp(7)
    if P["TRIM"]:
        e("    v_pk_mul_f32 v[8:9], v[8:9], s[76:77]")
        e("    v_pk_mul_f32 v[10:11], v[10:11], s[76:77]")
        e("    v_cvt_pk_bf16_f32 v8, v8, v9")
        e("    v_cvt_pk_bf16_f32 v9, v10, v11")
        e(f"    ds_write_b64 v60, v[8:9] offset:{L_S}")
        e("    s_mov_b64 exec, s[72:73]")
    else:
        e("    s_mov_b32 s34, 0x36800000              ; 2^-18")
        e("    s_mov_b32 s35, 0x36800000")
        e("    v_pk_mul_f32 v[8:9], v[8:9], s[34:35]")
        e("    v_pk_mul_f32 v[10:11], v[10:11], s[34:35]")
        e("    v_cvt_pk_bf16_f32 v8, v8, v9")
        e("    v_cvt_pk_bf16_f32 v9, v10, v11")
        e("    v_lshrrev_b32 v10, 1, v3               ; 8q")
        e("    v_lshrrev_b32 v11, 6, v3               ; q>>2")
        e("    v_lshlrev_b32 v11, 3, v11")
        e("    v_sub_u32 v10, v10, v11                ; 24*(q>>2) + 8*(q&3)")
        e(f"    ds_write_b64 v10, v[8:9] offset:{L_S}")
        e("    s_mov_b64 exec, s[72:73]")
        e("    v_lshlrev_b32 v10, 4, v5               ; 16*g4")
    SADDR = "v61" if P["TRIM"] else "v10"
    NL2E = "s[78:79]" if P["TRIM"] else "s[34:35]"
    NL2E0 = "s78" if P["TRIM"] else "s34"
    sregs = [12, 16, 20, 48, 52, 56]
    for kk in range(6):
        d = sregs[kk]
        e(f"    ds_read_b128 v[{d}:{d+3}], {SADDR} offset:{L_S + 64*kk}")
    for kk in range(6):
        d = sregs[kk]
        w = 24 + 4 * kk
        e(f"    s_waitcnt lgkmcnt({5-kk})" if not P["DIAG"] else "    s_waitcnt lgkmcnt(0)")
        c = "0" if kk == 0 else "v[8:11]"
        e(f"    v_mfma_f32_16x16x32_bf16 v[8:11], v[{d}:{d+3}], v[{w}:{w+3}], {c}")
    for p in range(6):
        e(f"    ds_read_b128 v[{24+4*p}:{27+4*p}], v3 offset:{L_WU + 1024*p}")
    if not P["TRIM"]:
        e("    s_mov_b32 s34, 0xbfb8aa3b              ; -log2(e)")
        e("    s_mov_b32 s35, 0xbfb8aa3b")
    e("    s_nop 1")
    e("    v_cvt_pk_bf16_f32 v8, v8, v8")
    e("    v_lshlrev_b32 v8, 16, v8")
    e(f"    v_mul_f32 v9, {NL2E0}, v8")
    e("    v_exp_f32 v9, v9")
    e("    s_nop 0")
    e("    v_add_f32 v9, 1.0, v9")
    e("    v_rcp_f32 v9, v9")
    e("    s_nop 0")
    e("    v_mul_f32 v8, v8, v9                   ; silu")
    e("    s_nop 1")
    e("    v_mov_b32_dpp v9, v8 quad_perm:[1,0,3,2] row_mask:0xf bank_mask:0xf")
    e("    v_cvt_pk_bf16_f32 v8, v8, v9           ; even lanes: {h[j], h[j+1]}")
    e("    s_nop 0")
    for p in range(6):
        e(f"    v_readlane_b32 s{64+p}, v8, {2*p}")
    e("    s_waitcnt lgkmcnt(0)")
    for p in range(6):
        for n in range(4):
            c = "0" if p == 0 else f"v{12+n}"
            e(f"    v_dot2_f32_bf16 v{12+n}, v{24+4*p+n}, s{64+p}, {c}")
    e("    s_nop 2")
    e("    v_cvt_pk_bf16_f32 v8, v12, v13")
    e("    v_cvt_pk_bf16_f32 v9, v14, v15")
    e("    v_lshlrev_b32 v12, 16, v8")
    e("    v_and_b32 v13, 0xffff0000, v8")
    e("    v_lshlrev_b32 v14, 16, v9")
    e("    v_and_b32 v15, 0xffff0000, v9")
    e(f"    v_pk_mul_f32 v[12:13], v[12:13], {NL2E}")
    e(f"    v_pk_mul_f32 v[14:15], v[14:15], {NL2E}")
    for n in range(4):
        e(f"    v_exp_f32 v{12+n}, v{12+n}")
    e("    s_nop 0")
    for n in range(4):
        e(f"    v_add_f32 v{12+n}, 1.0, v{12+n}")
    for n in range(4):
        e(f"    v_rcp_f32 v{12+n}, v{12+n}")
    e("    s_nop 0")
    e("    v_cvt_pk_bf16_f32 v8, v12, v13")
    e("    v_cvt_pk_bf16_f32 v9, v14, v15")
    e("    v_lshlrev_b32 v12, 16, v8")
    e("    v_and_b32 v13, 0xffff0000, v8")
    e("    v_lshlrev_b32 v14, 16, v9")
    e("    v_and_b32 v15, 0xffff0000, v9")
    e(f"    ds_write_b128 v3, v[12:15] offset:{L_G}")
    e("    s_waitcnt lgkmcnt(0)")
    stamp(8)
    e("L_pubdone:")
    e("    s_mov_b64 exec, -1")
    if P["PRIO"]:
        e("    s_setprio 0")
    e("L_wait_g:")
    e("    s_waitcnt vmcnt(0) lgkmcnt(0)")
    e("    s_barrier                              ; B3")
    if P["MEAS"]:
        e("    s_memrealtime s[44:45]")
    e("    ds_read_b128 v[24:27], v6")
    e("    ds_read_b128 v[28:31], v6 offset:16")
    e("    ds_read_b128 v[32:35], v7")
    e("    ds_read_b128 v[36:39], v7 offset:16")
    if LAY:
        e("    ds_read_b128 v[40:43], v1")
        e("    ds_read_b128 v[44:47], v1 offset:16")
    else:
        e("    ds_read_b128 v[40:43], v6 offset:256")
        e("    ds_read_b128 v[44:47], v6 offset:272")
    e("    s_mov_b32 s34, 0xffff0000")
    cnt = [0]

    def store_unit(slot, first=False):
        def unpack(m, tb):
            d = 64 + 12 * slot + 4 * m
            for q in range(4):
                e(f"    v_lshlrev_b32 v{tb+2*q}, 16, v{d+q}")
                e(f"    v_and_b32 v{tb+2*q+1}, s34, v{d+q}")
        if first:
            assert cnt[0] == 0
            unpack(0, 8)
            unpack(1, 16)
        for m in range(3):
            d = 64 + 12 * slot + 4 * m
            g = 24 + 8 * m
            tb = 8 + 8 * (cnt[0] % 2)
            cnt[0] += 1
            if not (first and m < 2):
                unpack(m, tb)
            if first:
                e(f"    s_waitcnt lgkmcnt({0 if (P['DIAG'] or P['MEAS']) else 4 - 2 * m})")
            for q in range(4):
                e(f"    v_pk_mul_f32 v[{tb+2*q}:{tb+2*q+1}], v[{tb+2*q}:{tb+2*q+1}], v[{g+2*q}:{g+2*q+1}]")
            for q in range(4):
                e(f"    v_cvt_pk_bf16_f32 v{d+q}, v{tb+2*q}, v{tb+2*q+1}")
            if P["WS"]:
                e(f"    s_waitcnt vmcnt({P['WS'] - 1})")
            fl = P["STF"]
            if cnt[0] > 3 * NE - P["PL"]:
                fl = P["PLF"]
            e(f"    buffer_store_dwordx4 v[{d}:{d+3}], {VOFF}, s[20:23], s32 offen offset:{MOFF*m} {fl}")

    if not P["EARLY"]:
        e("    s_waitcnt lgkmcnt(0)")
    assert GRP == 1 or NX == 0
    for t in range(NX, NO):
        set_off(t)
        store_unit(t, first=(t == NX and bool(P["EARLY"])))
    if NE > NO:
        for x in range(NX):
            set_off(16 + x, None, x)
            store_unit(x)
        e("    s_bitcmp1_b32 s2, 0")
        e("    s_cbranch_scc1 L_st_done")
        for x in range(NX):
            for m in range(3):
                d = 64 + 12 * x + 4 * m
                e(f"    ds_read_b128 v[{d}:{d+3}], v0 offset:{3072 * x + 1024 * m}")
        for t in range(NO, 16):
            set_off(t, 0)
            store_unit(t)
        e("    s_waitcnt lgkmcnt(0)")
        for t in range(NX):
            set_off(t, 0)
            store_unit(t)
        e("L_st_done:")
    if P["REPS"]:
        assert NE == 16
        for i in range(48):
            t, m = divmod(i, 3)
            if m == 0:
                e("    s_mov_b32 s32, s33" if t == 0 else f"    s_add_u32 s32, s32, {step}")
            d = 64 + 4 * i
            e(f"    buffer_store_dwordx4 v[{d}:{d+3}], {VOFF}, s[20:23], s32 offen offset:{MOFF*m} {P['STF']}")
    if P["DIAG"]:
        stamp(9)
        e("    s_waitcnt vmcnt(0)")
        stamp(10)
        e("    s_lshl_b32 s34, s2, 3")
        e("    s_add_u32 s34, s34, s3")
        e("    s_lshl_b32 s34, s34, 6")
        e(f"    s_add_u32 s34, s34, {WS_DIAG}")
        e("    v_mov_b32 v8, s34")
        e("    s_waitcnt lgkmcnt(0)")
        e("    s_mov_b64 exec, 1")
        for k in range(12):
            e(f"    v_mov_b32 v{12+k}, s{40+2*k}")
        e("    s_getreg_b32 s34, hwreg(HW_REG_XCC_ID)")
        e("    v_mov_b32 v24, s34")
        e("    v_mov_b32 v25, s36")
        e("    global_store_dwordx4 v8, v[12:15], s[14:15]")
        e("    global_store_dwordx4 v8, v[16:19], s[14:15] offset:16")
        e("    global_store_dwordx4 v8, v[20:23], s[14:15] offset:32")
        e("    global_store_dwordx2 v8, v[24:25], s[14:15] offset:48")
    if P["MEAS"]:
        e("    s_cmp_lg_u32 s3, 0")
        e("    s_cbranch_scc1 L_end")
        e("    v_mov_b32 v57, 192")
        e("    global_load_dword v56, v57, s[12:13] sc1")
        e("    s_waitcnt vmcnt(0)")
        e("    s_memrealtime s[46:47]")
        e("    v_readfirstlane_b32 s42, v56")
        e("    s_waitcnt lgkmcnt(0)")
        e("    s_not_b32 s42, s42")
        if P["MEAS"] == 1:
            e("    s_sub_u32 s43, s46, s42")
        elif P["MEAS"] == 2:
            e("    s_sub_u32 s43, s44, s42")
        elif P["MEAS"] == 3:
            e("    s_sub_u32 s43, s40, s42")
            e("    s_mul_i32 s43, s43, 10")
        elif P["MEAS"] == 5:
            e("    s_sub_u32 s43, s40, s50")
            e("    s_mul_i32 s43, s43, 40")
        else:
            e("    s_mov_b32 s43, 0")
        e("    s_min_u32 s43, s43, 100000")
        e("L_mspin:")
        e("    s_sleep 1")
        e("    s_memrealtime s[48:49]")
        e("    s_waitcnt lgkmcnt(0)")
        e("    s_sub_u32 s48, s48, s46")
        e("    s_cmp_lt_u32 s48, s43")
        e("    s_cbranch_scc1 L_mspin")
    e("L_end:")
    e("    s_endpgm")
    e("L_noflag:")
    e("    s_cmp_lg_u32 s3, 0")
    e("    s_cbranch_scc1 L_pubdone")
    e("    s_branch L_fallback")
    e("L_others:")
    if P["DRYW"] >= 0:
        e(f"    s_cmp_lg_u32 s3, {P['DRYW']}")
        e("    s_cbranch_scc1 L_wait_g")
    if P["PFC"]:
        e("    s_getpc_b64 s[74:75]")
        e("L_pc:")
        e("    s_sub_u32 s74, s74, L_pc-L_wait_g")
        e("    s_subb_u32 s75, s75, 0")
        e("    v_lshlrev_b32 v8, 3, v3                ; lane*128")
        e("    v_min_u32 v8, L_end-L_wait_g, v8")
        e("    global_load_dword v63, v8, s[74:75]")
    if P["DRY"]:
        e("    s_mov_b64 s[72:73], 0")
        e("    s_mov_b64 exec, 0")
        e("    s_branch L_mlp")
    else:
        e("    s_branch L_wait_g")
    e("L_fallback:")
    e("    s_waitcnt vmcnt(0) lgkmcnt(0)")
    e("    v_bfe_u32 v4, v3, 4, 4                 ; j again")
    build_A()
    image_addr()
    e("    s_mov_b32 s36, 0")
    e("L_fb_loop:")
    for m in range(3):
        e(f"    buffer_load_dwordx4 v[{48+4*m}:{51+4*m}], {VOFF}, s[16:19], s36 offen offset:{MOFF*m}")
    e("    s_waitcnt vmcnt(0)")
    for m in range(3):
        mfma_for(48 + 4 * m, m)
    e("    s_add_u32 s36, s36, 3072")
    e(f"    s_cmp_lt_u32 s36, {XBYTES}")
    e("    s_cbranch_scc1 L_fb_loop")
    e("    s_nop 7")
    acc_fold()
    e(f"    ds_write_b128 v60, v[16:19] offset:{L_PART}")
    gather_addr()
    gather_wd(range(6), 8)
    e(f"    ds_read_b128 v[8:11], v3 offset:{L_PART}")
    if P["TRIM"]:
        mlp_addrs()
    e("    s_waitcnt lgkmcnt(0)")
    e("    s_mov_b32 exec_lo, 0x77777777")
    e("    s_mov_b32 exec_hi, 0x77777777")
    e("    s_branch L_mlp")
    e('.section .rodata,"a"')
    e(".p2align 6")
    e(f".amdhsa_kernel {NAME}_kernel")
    e("  .amdhsa_next_free_vgpr 256")
    e("  .amdhsa_next_free_sgpr 80")
    e("  .amdhsa_accum_offset 256")
    e("  .amdhsa_group_segment_fixed_size 0")
    e("  .amdhsa_kernarg_size 48")
    e("  .amdhsa_user_sgpr_count 2")
    e("  .amdhsa_user_sgpr_kernarg_segment_ptr 1")
    e("  .amdhsa_system_sgpr_workgroup_id_x 1")
    e("  .amdhsa_float_denorm_mode_32 3")
    e("  .amdhsa_float_denorm_mode_16_64 3")
    e(".end_amdhsa_kernel")
    return "\n".join(o) + "\n"


def parse_args(argv):
    out = None
    kw = {}
    for a in argv:
        if "=" in a:
            k, v = a.split("=", 1)
            try:
                v = int(v)
            except ValueError:
                v = v.replace("+", " ")
            kw[k] = v
        else:
            out = a
    return out, kw


if __name__ == "__main__":
    out, kw = parse_args(sys.argv[1:])
    txt = gen(**kw)
    if out:
        open(out, "w").write(txt)
    else:
        sys.stdout.write(txt)
```
